```python
import torch

def _softmax(x, axis=-1):
    return torch.softmax(x, dim=axis)
def _gelu(x):
    return torch.nn.functional.gelu(x, approximate="tanh")
def _silu(x):
    return torch.nn.functional.silu(x)
def _sigmoid(x):
    return torch.sigmoid(x)
def _layernorm(x, axis=-1, eps=1e-5):
    m = x.mean(dim=axis, keepdim=True)
    v = x.var(dim=axis, keepdim=True, unbiased=False)
    return (x - m) / torch.sqrt(v + eps)
def _scatter_add(tgt, idx, src, axis=0):
    return tgt.clone().index_add_(axis, idx, src)
def _segment_sum(src, seg, n):
    out = torch.zeros((n,) + src.shape[1:], dtype=src.dtype)
    return out.index_add_(0, seg, src)
def _pad(x, pw):
    flat = tuple(v for pair in reversed(pw) for v in pair)
    return torch.nn.functional.pad(x, flat)

kernel_name = 'interleave_layers__sliding_block__geglu_ffn__prompt'

def setup_inputs():

    _w = (lambda a: (lambda t: t.to(torch.bfloat16) if t.is_floating_point() else t)(torch.as_tensor(a)))
    def _A_setup():
        B, S, D = 1, 2048, 448
        return {
            "x": _w((lambda *s: torch.randn(*s, dtype=torch.bfloat16) * 0.05)(B, S, D)),
            "wqkv": _w((lambda *s: torch.randn(*s, dtype=torch.bfloat16) * 0.05)(D, 3 * D)),
            "wo": _w((lambda *s: torch.randn(*s, dtype=torch.bfloat16) * 0.05)(D, D)),
        }
    _A_in = _A_setup()

    def _B_setup():
        B, S, D, F = 1, 2048, 448, 1792
        return {
            "x": _w((lambda *s: torch.randn(*s, dtype=torch.bfloat16) * 0.05)(B, S, D)),
            "w_gate": _w((lambda *s: torch.randn(*s, dtype=torch.bfloat16) * 0.05)(D, F)),
            "w_up": _w((lambda *s: torch.randn(*s, dtype=torch.bfloat16) * 0.05)(D, F)),
            "w_down": _w((lambda *s: torch.randn(*s, dtype=torch.bfloat16) * 0.05)(F, D)),
        }
    _B_in = _B_setup()

    return {
        "A_x": _A_in["x"],
        "A_wqkv": _A_in["wqkv"],
        "A_wo": _A_in["wo"],
        "B_x": _B_in["x"],
        "B_w_gate": _B_in["w_gate"],
        "B_w_up": _B_in["w_up"],
        "B_w_down": _B_in["w_down"],
    }

def reference(A_x, A_wqkv, A_wo, B_x, B_w_gate, B_w_up, B_w_down):
    def _A_ref(x, wqkv, wo):
        B, S, D = x.shape
        H = 16; Dh = D // H; W = 256
        qkv = (lambda x, *d: x.permute(*d))((x @ wqkv).reshape(B, S, 3, H, Dh), 2, 0, 3, 1, 4)
        q, k, v = qkv[0], qkv[1], qkv[2]
        scores = torch.einsum("bhqd,bhkd->bhqk", q, k) * (Dh ** -0.5)
        idx = torch.arange(S)
        mask = (idx[:, None] - idx[None, :] >= 0) & (idx[:, None] - idx[None, :] < W)
        scores = torch.where(mask[None, None], scores, -1e9)
        p = _softmax(scores, axis=-1)
        o = torch.einsum("bhqk,bhkd->bhqd", p, v)
        return (lambda x, *d: x.permute(*d))(o, 0, 2, 1, 3).reshape(B, S, D) @ wo

    def _B_ref(x, w_gate, w_up, w_down):
        return (_gelu(x @ w_gate) * (x @ w_up)) @ w_down

    x = A_x
    x = x + _A_ref(_layernorm(x, axis=-1), A_wqkv, A_wo)
    x = x + _B_ref(_layernorm(x, axis=-1), B_w_gate, B_w_up, B_w_down)
    x = x + _A_ref(_layernorm(x, axis=-1), A_wqkv, A_wo)
    x = x + _B_ref(_layernorm(x, axis=-1), B_w_gate, B_w_up, B_w_down)
    return x
```

```python
import re

_REG = re.compile(r"^(-|\|)?(abs\()?([vas])(\d+|\[(\d+):(\d+)\])\)?\|?$")


def parse_reg(tok):
    tok = tok.strip()
    if tok in ("vcc", "exec", "m0", "scc", "vcc_lo", "vcc_hi", "exec_lo", "exec_hi"):
        base = tok.split("_")[0]
        return [(base, 0)]
    m = _REG.match(tok)
    if not m:
        return []
    f = m.group(3)
    if m.group(5) is not None:
        return [(f, i) for i in range(int(m.group(5)), int(m.group(6)) + 1)]
    return [(f, int(m.group(4)))]


TRANS = ("v_exp_f32", "v_log_f32", "v_rcp_f32", "v_rsq_f32", "v_sqrt_f32", "v_sin_f32", "v_cos_f32")


class Ins:
    __slots__ = ("text", "op", "kind", "reads", "writes", "passes", "srcc", "states", "dpp", "wide_store", "sdata")

    def __init__(self, text):
        self.text = text
        body = text.split(";")[0].strip()
        parts = body.split(None, 1)
        self.op = parts[0]
        rest = parts[1] if len(parts) > 1 else ""
        ops = []
        cur = ""
        depth = 0
        for ch in rest:
            if ch == "[":
                depth += 1
            if ch == "]":
                depth -= 1
            if ch == "," and depth == 0:
                ops.append(cur.strip())
                cur = ""
            else:
                cur += ch
        if cur.strip():
            ops.append(cur.strip())
        mods = []
        if ops:
            toks = ops[-1].split()
            ops[-1] = toks[0] if toks else ""
            mods = toks[1:]
        op = self.op
        self.reads = []
        self.writes = []
        self.passes = 0
        self.srcc = []
        self.states = 1
        self.dpp = any(m.startswith(("quad_perm", "row_", "wave_")) for m in mods)
        self.wide_store = False
        self.sdata = []
        R = lambda i: parse_reg(ops[i]) if i < len(ops) else []
        if op.startswith("v_mfma"):
            self.kind = "mfma"
            self.passes = 8 if "32x32" in op else 4
            self.writes = R(0)
            self.reads = R(1) + R(2) + R(3)
            self.srcc = R(3)
        elif op.startswith("v_cmp"):
            self.kind = "valu"
            self.writes = R(0)
            self.reads = R(1) + R(2)
        elif op.startswith("v_permlane") and "swap" in op:
            self.kind = "valu"
            self.writes = R(0) + R(1)
            self.reads = R(0) + R(1)
        elif op.startswith("v_"):
            self.kind = "valu"
            self.writes = R(0)
            k = 1
            if op.startswith(("v_add_co", "v_sub_co", "v_addc_co", "v_subb_co", "v_div_scale")):
                self.writes += R(1)
                k = 2
            for i in range(k, len(ops)):
                self.reads += R(i)
            if op.startswith(("v_fmac", "v_pk_fmac", "v_dot2c", "v_writelane")) or "_d16" in op:
                self.reads += R(0)
            if self.dpp:
                self.reads += R(0)
        elif op.startswith("ds_read") or op.startswith("ds_bpermute") or op.startswith("ds_swizzle") or op.startswith("ds_permute"):
            self.kind = "ds"
            self.writes = R(0)
            for i in range(1, len(ops)):
                self.reads += R(i)
        elif op.startswith("ds_write"):
            self.kind = "ds"
            for i in range(len(ops)):
                self.reads += R(i)
        elif op.startswith("buffer_load"):
            self.kind = "vmem"
            if "lds" in mods:
                for i in range(len(ops)):
                    self.reads += R(i)
                self.reads.append(("m0", 0))
            else:
                self.writes = R(0)
                for i in range(1, len(ops)):
                    self.reads += R(i)
        elif op.startswith("buffer_store") or op.startswith("buffer_atomic"):
            self.kind = "vmem"
            for i in range(len(ops)):
                self.reads += R(i)
            self.sdata = R(0)
            self.wide_store = op.endswith("x4") or op.endswith("x3")
        elif op.startswith("global_load"):
            self.kind = "vmem"
            self.writes = R(0)
            for i in range(1, len(ops)):
                self.reads += R(i)
        elif op.startswith("global_store"):
            self.kind = "vmem"
            for i in range(len(ops)):
                self.reads += R(i)
            self.sdata = R(1)
            self.wide_store = op.endswith("x4") or op.endswith("x3")
        elif op == "s_nop":
            self.kind = "nop"
            self.states = int(ops[0], 0) + 1
        elif op.startswith(("s_load", "s_buffer_load", "s_memtime", "s_memrealtime")):
            self.kind = "smem"
            self.writes = R(0)
            for i in range(1, len(ops)):
                self.reads += R(i)
        elif op.startswith("s_"):
            self.kind = "salu"
            if op.startswith(("s_cmp", "s_cbranch", "s_branch", "s_waitcnt", "s_barrier", "s_endpgm", "s_setprio", "s_sleep", "s_bitcmp")):
                for i in range(len(ops)):
                    self.reads += R(i)
            else:
                self.writes = R(0)
                for i in range(1, len(ops)):
                    self.reads += R(i)
                if "saveexec" in op:
                    self.writes.append(("exec", 0))
        else:
            raise ValueError("unknown op " + text)


def need_states(p, c):
    n = 0
    pw = set(p.writes)
    cr = set(c.reads)
    cw = set(c.writes)
    pvw = {r for r in pw if r[0] in "va"}
    psw = {r for r in pw if r[0] in ("s", "vcc")}
    if p.kind == "valu":
        if c.kind == "mfma" and pvw & cr:
            n = max(n, 2)
        if c.kind == "mfma" and ("exec", 0) in pw:
            n = max(n, 4)
        if c.kind == "valu":
            if p.op.startswith(TRANS) and pvw & cr and not c.op.startswith(TRANS):
                n = max(n, 1)
            if p.op.startswith(TRANS) and pvw & cr:
                n = max(n, 1)
            if c.op.startswith("v_permlane") and pvw & cr:
                n = max(n, 2)
            if c.dpp and pvw & cr:
                n = max(n, 2)
            if c.op.startswith(("v_readlane", "v_readfirstlane")) and pvw & cr:
                n = max(n, 1)
            if psw & cr:
                n = max(n, 4 if c.op.startswith(("v_readlane", "v_writelane")) else 2)
        if c.kind == "vmem" and psw & cr:
            n = max(n, 5)
        if c.kind in ("salu", "smem") and psw & cr:
            n = max(n, 2)
    if p.kind == "mfma":
        big = 12 if p.passes == 8 else 8
        if c.kind == "mfma":
            ab = cr - set(c.srcc) if False else None
            cab = set(c.reads[: len(c.reads) - len(c.srcc)])
            if pvw & cab:
                n = max(n, big)
            if pvw & set(c.srcc):
                if set(c.srcc) == pvw and c.passes == p.passes:
                    pass
                else:
                    n = max(n, 10 if p.passes == 8 else 6)
            elif pvw & cw:
                n = max(n, big)
        elif c.kind in ("valu", "vmem", "ds"):
            if pvw & (cr | cw):
                n = max(n, big)
        if c.kind == "valu" and set(p.srcc) & cw:
            n = max(n, 7 if p.passes == 8 else 3)
    if p.kind == "vmem" and p.wide_store:
        if set(p.sdata) & cw:
            n = max(n, 2)
    if p.kind == "salu" and ("m0", 0) in pw and ("m0", 0) in cr and c.kind in ("vmem", "ds"):
        n = max(n, 1)
    return n


class Asm:
    def __init__(self):
        self.out = []
        self.win = []
        self.vm = 0
        self.lg = 0
        self.vm_done = 0
        self.lg_done = 0
        self.nops = 0
        self.ninst = 0

    def raw(self, text):
        self.out.append(text)

    def comment(self, t):
        self.out.append("    ; " + t)

    def label(self, name):
        self.out.append(name + ":")
        self.fence()

    def fence(self):
        if self.win:
            worst = 0
            dist = 0
            for p in reversed(self.win):
                need = 0
                if p.kind == "mfma":
                    need = 12 if p.passes == 8 else 8
                elif p.kind == "valu":
                    need = 5
                elif p.kind == "vmem" and p.wide_store:
                    need = 2
                elif p.kind == "salu":
                    need = 1
                worst = max(worst, need - dist)
                dist += p.states
            while worst > 0:
                k = min(worst, 16)
                self._push(Ins("s_nop %d" % (k - 1)))
                worst -= k
        self.win = []

    def _push(self, ins):
        self.out.append("    " + ins.text)
        self.win.append(ins)
        if len(self.win) > 24:
            self.win.pop(0)
        self.ninst += 1

    def __call__(self, text):
        ins = Ins(text)
        dist = 0
        worst = 0
        for p in reversed(self.win):
            need = need_states(p, ins)
            worst = max(worst, need - dist)
            dist += p.states
        while worst > 0:
            k = min(worst, 16)
            self._push(Ins("s_nop %d" % (k - 1)))
            self.nops += 1
            worst -= k
        self._push(ins)
        tok = None
        if ins.kind == "vmem":
            tok = ("vm", self.vm)
            self.vm += 1
        elif ins.kind == "ds":
            tok = ("lg", self.lg)
            self.lg += 1
        return tok

    def wait(self, *toks):
        vmn = None
        lgn = None
        for t in toks:
            if t is None:
                continue
            if isinstance(t, list):
                self.wait(*t)
                continue
            kind, idx = t
            if kind == "vm" and idx >= self.vm_done:
                n = self.vm - 1 - idx
                vmn = n if vmn is None else min(vmn, n)
            if kind == "lg" and idx >= self.lg_done:
                n = self.lg - 1 - idx
                lgn = n if lgn is None else min(lgn, n)
        parts = []
        if vmn is not None:
            vmn = min(vmn, 63)
            parts.append("vmcnt(%d)" % vmn)
            self.vm_done = max(self.vm_done, self.vm - vmn)
        if lgn is not None:
            lgn = min(lgn, 15)
            parts.append("lgkmcnt(%d)" % lgn)
            self.lg_done = max(self.lg_done, self.lg - lgn)
        if parts:
            self("s_waitcnt " + " ".join(parts))

    def wait_all_vm(self):
        self("s_waitcnt vmcnt(0)")
        self.vm_done = self.vm

    def wait_all_lg(self):
        self("s_waitcnt lgkmcnt(0)")
        self.lg_done = self.lg

    def wait_all(self):
        self("s_waitcnt vmcnt(0) lgkmcnt(0)")
        self.vm_done = self.vm
        self.lg_done = self.lg

    def text(self):
        return "\n".join(self.out) + "\n"


def v(i, n=1):
    return "v%d" % i if n == 1 else "v[%d:%d]" % (i, i + n - 1)


def a(i, n=1):
    return "a%d" % i if n == 1 else "a[%d:%d]" % (i, i + n - 1)


def s(i, n=1):
    return "s%d" % i if n == 1 else "s[%d:%d]" % (i, i + n - 1)
```

```python
import sys, struct, math
sys.path.insert(0, "tools")
from emit import Asm, v, a, s

S_, D_, H_, DH, F_ = 2048, 448, 16, 28, 1792
KB = 1024
WQKV = 0
WO = WQKV + 16 * 88 * KB
WGU = WO + 448 * KB
WD = WGU + 16 * 7 * 29 * KB
XF = WD + 1568 * KB + 4 * KB
XF_SZ = 64 * 28 * KB
ST = XF + 4 * XF_SZ
ST_SZ = 2048 * 32
KV = ST + 4 * ST_SZ
KV_SZ = 256 * 16 * KB
OB = KV + 2 * KV_SZ
OB_SZ = 128 * 16 * KB
HB = OB + 2 * OB_SZ
HB_SZ = 128 * 112 * 512
FLAGS = HB + 2 * HB_SZ
DBG = FLAGS + 4 * KB
WS_BYTES = 268435456

SLOT = 29 * KB
REGB = 88 * KB
LDS_TOTAL = 160 * KB
VST = LDS_TOTAL - KB
RED_PITCH = 464
RED_WAVE = 32 * RED_PITCH


def f32bits(x):
    return struct.unpack("<I", struct.pack("<f", x))[0]


def slot_addr(i):
    return i * SLOT if i < 3 else REGB + (i - 3) * SLOT


HEADER = """; Kernarg layout for this problem (80 bytes, ptrs only, base s[0:1]):
"""


def kernel_desc(name, vgpr, accum, sgpr=102):
    return f""".section .rodata,"a"
.p2align 6
.amdhsa_kernel {name}
  .amdhsa_next_free_vgpr {vgpr}
  .amdhsa_next_free_sgpr {sgpr}
  .amdhsa_accum_offset {accum}
  .amdhsa_group_segment_fixed_size 0
  .amdhsa_kernarg_size 80
  .amdhsa_user_sgpr_count 2
  .amdhsa_user_sgpr_kernarg_segment_ptr 1
  .amdhsa_system_sgpr_workgroup_id_x 1
.end_amdhsa_kernel
.text
"""


def kernel_head(A, name):
    A.raw(".text")
    A.raw(".globl %s" % name)
    A.raw(".p2align 8")
    A.raw(".type %s,@function" % name)
    A.raw("%s:" % name)


def srd(A, d, lo, hi, nbytes):
    A("s_mov_b32 %s, %s" % (s(d), s(lo)))
    A("s_mov_b32 %s, %s" % (s(d + 1), s(hi)))
    A("s_mov_b32 %s, 0x%x" % (s(d + 2), nbytes))
    A("s_mov_b32 %s, 0x00020000" % s(d + 3))


PREP_WGS = 296


def gen_prep(A):
    kernel_head(A, "prep_kernel")
    A("s_cmp_ge_u32 s2, %d" % PREP_WGS)
    A("s_cbranch_scc1 Lprep_end")
    A("s_load_dwordx16 s[16:31], s[0:1], 0")
    A("s_load_dwordx4 s[32:35], s[0:1], 64")
    A("v_lshrrev_b32 v2, 6, v0")
    A("v_and_b32 v0, 63, v0")
    A("v_readfirstlane_b32 s36, v2")
    A("v_lshlrev_b32 v1, 4, v0")
    A("v_and_b32 v3, 31, v0")
    A("v_lshrrev_b32 v4, 5, v0")
    A("v_and_b32 v5, 15, v0")
    A("v_lshrrev_b32 v6, 4, v0")
    A("s_waitcnt lgkmcnt(0)")
    srd(A, 4, 34, 35, WS_BYTES)
    for i in range(28):
        A("v_mov_b32 %s, 0" % v(16 + i))
        A("v_mov_b32 %s, 0" % v(64 + i))
    A("s_cmp_lt_u32 s2, 48")
    A("s_cbranch_scc1 Lprep_qkv")
    A("s_cmp_lt_u32 s2, 160")
    A("s_cbranch_scc1 Lprep_gu")
    A("s_cmp_lt_u32 s2, 176")
    A("s_cbranch_scc1 Lprep_wo")
    A("s_cmp_lt_u32 s2, 232")
    A("s_cbranch_scc1 Lprep_wd")
    A("s_branch Lprep_x")

    def tile_loads(srdreg, pitch):
        A("s_mul_i32 s40, s36, %d" % (7 * 16 * pitch))
        for ss in range(7):
            for j in range(8):
                A("buffer_load_short_d16%s %s, v7, %s, s40 offen" % ("_hi" if j & 1 else "", v(16 + 4 * ss + j // 2 + (48 if j & 1 else 0)), s(srdreg, 4)))
                A("s_add_u32 s40, s40, %d" % (pitch if j < 7 else 9 * pitch))

    A.label("Lprep_qkv")
    srd(A, 8, 18, 19, 448 * 1344 * 2)
    A("s_mul_hi_u32 s37, s2, 0x55555556")
    A("s_mul_i32 s38, s37, 3")
    A("s_sub_u32 s38, s2, s38")
    A("s_mul_i32 s39, s38, 448")
    A("s_mul_i32 s41, s37, 28")
    A("s_add_u32 s39, s39, s41")
    A("v_add_u32 v7, s39, v3")
    A("v_lshlrev_b32 v7, 1, v7")
    A("v_mul_u32_u24 v8, %d, v4" % (8 * 2688))
    A("v_add_u32 v7, v7, v8")
    A("v_mov_b32 v8, 0x40000000")
    A("v_cmp_gt_u32 vcc, 28, v3")
    A("v_cndmask_b32 v7, v8, v7, vcc")
    tile_loads(8, 2688)
    A("s_mul_i32 s42, s37, 88")
    A("s_mul_i32 s41, s38, 29")
    A("s_add_u32 s42, s42, s41")
    A("s_lshl_b32 s42, s42, 10")
    A("s_add_u32 s42, s42, %d" % WQKV)
    A("s_branch Lprep_tile_fin")

    A.label("Lprep_gu")
    srd(A, 8, 24, 25, 448 * 1792 * 2)
    srd(A, 12, 26, 27, 448 * 1792 * 2)
    A("s_sub_u32 s43, s2, 48")
    A("s_lshl_b32 s39, s43, 4")
    A("v_add_u32 v7, s39, v5")
    A("v_lshlrev_b32 v7, 1, v7")
    A("v_mul_u32_u24 v8, %d, v4" % (8 * 3584))
    A("v_add_u32 v7, v7, v8")
    A("s_mov_b32 s44, 0x0000ffff")
    A("s_mov_b32 s45, 0x0000ffff")
    A("s_mov_b64 exec, s[44:45]")
    tile_loads(8, 3584)
    A("s_not_b64 exec, exec")
    tile_loads(12, 3584)
    A("s_mov_b64 exec, -1")
    A("s_mul_i32 s42, s43, %d" % (29 * KB))
    A("s_add_u32 s42, s42, %d" % WGU)

    A.label("Lprep_tile_fin")
    A("s_mul_i32 s41, s36, %d" % (7 * KB))
    A("s_add_u32 s41, s41, s42")
    A.wait_all_vm()
    for i in range(28):
        A("v_or_b32 %s, %s, %s" % (v(16 + i), v(16 + i), v(64 + i)))
    for ss in range(7):
        if ss == 4:
            A("s_add_u32 s41, s41, 4096")
        A("buffer_store_dwordx4 %s, v1, s[4:7], s41 offen offset:%d" % (v(16 + 4 * ss, 4), (ss % 4) * KB))
    A("v_mov_b32 v10, 0")
    A("v_mov_b32 v11, 0")
    for i in range(28):
        A("v_lshlrev_b32 v8, 16, %s" % v(16 + i))
        A("v_and_b32 v9, 0xffff0000, %s" % v(16 + i))
        A("v_add_f32 v10, v10, v8")
        A("v_add_f32 v11, v11, v9")
    A("v_add_f32 v10, v10, v11")
    A("s_lshl_b32 s41, s36, 8")
    A("v_lshlrev_b32 v8, 2, v0")
    A("v_add_u32 v8, s41, v8")
    A("ds_write_b32 v8, v10")
    A.wait_all_lg()
    A("s_barrier")
    A("s_cmp_lg_u32 s36, 0")
    A("s_cbranch_scc1 Lprep_end")
    A("v_lshlrev_b32 v8, 2, v3")
    for q in range(8):
        A("ds_read_b32 %s, v8 offset:%d" % (v(44 + q), q * 128))
    A.wait_all_lg()
    for q in range(1, 8):
        A("v_add_f32 v44, v44, %s" % v(44 + q))
    A("v_cvt_pk_bf16_f32 v45, v44, v44")
    A("v_lshlrev_b32 v46, 16, v45")
    A("v_sub_f32 v47, v44, v46")
    A("v_cvt_pk_bf16_f32 v48, v47, v47")
    A("v_lshlrev_b32 v49, 16, v48")
    A("v_sub_f32 v50, v47, v49")
    A("v_cvt_pk_bf16_f32 v51, v50, v50")
    A("v_and_b32 v45, 0xffff, v45")
    A("v_or_b32 v52, v45, v49")
    A("v_and_b32 v53, 0xffff, v51")
    A("v_mov_b32 v54, 0")
    A("v_mov_b32 v55, 0")
    A("v_cmp_gt_u32 vcc, 32, v0")
    A("v_cndmask_b32 v52, v54, v52, vcc")
    A("v_cndmask_b32 v53, v54, v53, vcc")
    A("s_add_u32 s41, s42, %d" % (28 * KB))
    A("buffer_store_dwordx4 v[52:55], v1, s[4:7], s41 offen")
    A("s_branch Lprep_end")

    def frag_loads(masked_hi):
        for j in range(8):
            d = 8 * (j >> 2) + (j & 3)
            A("s_add_u32 s41, s40, %d" % (d * 896))
            if masked_hi and j == 4:
                A("s_mov_b32 s44, -1")
                A("s_mov_b32 s45, 0x0000ffff")
                A("s_mov_b64 exec, s[44:45]")
            for ft in range(7):
                A("buffer_load_short_d16%s %s, v7, s[8:11], s41 offen offset:%d" % ("_hi" if j & 1 else "", v(16 + 4 * ft + j // 2 + (48 if j & 1 else 0)), ft * 32))
        A("s_mov_b64 exec, -1")

    def lane_off16():
        A("v_lshrrev_b32 v7, 1, v6")
        A("v_lshlrev_b32 v7, 4, v7")
        A("v_and_b32 v8, 1, v6")
        A("v_lshlrev_b32 v8, 2, v8")
        A("v_add_u32 v7, v7, v8")
        A("v_mul_u32_u24 v7, 896, v7")
        A("v_lshlrev_b32 v8, 1, v5")
        A("v_add_u32 v7, v7, v8")

    A.label("Lprep_wo")
    srd(A, 8, 20, 21, 448 * 448 * 2)
    lane_off16()
    A("s_sub_u32 s43, s2, 160")
    A("s_lshr_b32 s37, s43, 2")
    A("s_and_b32 s38, s43, 3")
    A("s_lshl_b32 s38, s38, 2")
    A("s_add_u32 s38, s38, s36")
    A("s_mul_i32 s40, s38, %d" % (28 * 896))
    A("s_mul_i32 s41, s37, 224")
    A("s_add_u32 s40, s40, s41")
    frag_loads(True)
    A("s_lshl_b32 s42, s43, 2")
    A("s_add_u32 s42, s42, s36")
    A("s_mul_i32 s42, s42, %d" % (7 * KB))
    A("s_add_u32 s42, s42, %d" % WO)
    A("s_branch Lprep_frag_fin")

    A.label("Lprep_wd")
    srd(A, 8, 28, 29, 1792 * 448 * 2)
    lane_off16()
    A("s_sub_u32 s43, s2, 176")
    A("s_lshl_b32 s43, s43, 2")
    A("s_add_u32 s43, s43, s36")
    A("s_mul_hi_u32 s37, s43, 0x04924925")
    A("s_mul_i32 s38, s37, 56")
    A("s_sub_u32 s38, s43, s38")
    A("s_mul_i32 s40, s38, %d" % (32 * 896))
    A("s_mul_i32 s41, s37, 224")
    A("s_add_u32 s40, s40, s41")
    frag_loads(False)
    A("s_mul_i32 s42, s43, %d" % (7 * KB))
    A("s_add_u32 s42, s42, %d" % WD)

    A.label("Lprep_frag_fin")
    A.wait_all_vm()
    for i in range(28):
        A("v_or_b32 %s, %s, %s" % (v(16 + i), v(16 + i), v(64 + i)))
    for ft in range(7):
        if ft == 4:
            A("s_add_u32 s42, s42, 4096")
        A("buffer_store_dwordx4 %s, v1, s[4:7], s42 offen offset:%d" % (v(16 + 4 * ft, 4), (ft % 4) * KB))
    A("s_branch Lprep_end")

    A.label("Lprep_x")
    srd(A, 8, 16, 17, 2048 * 896)
    A("s_sub_u32 s43, s2, 232")
    A("v_mul_u32_u24 v7, 896, v3")
    A("v_lshlrev_b32 v8, 4, v4")
    A("v_add_u32 v7, v7, v8")
    A("s_mul_i32 s40, s43, %d" % (32 * 896))
    A("s_mul_i32 s41, s36, 224")
    A("s_add_u32 s40, s40, s41")
    for ss in range(7):
        A("buffer_load_dwordx4 %s, v7, s[8:11], s40 offen offset:%d" % (v(16 + 4 * ss, 4), ss * 32))
    A("v_and_b32 v8, 15, v0")
    A("v_lshlrev_b32 v8, 2, v8")
    A("s_lshl_b32 s41, s43, 6")
    A("s_add_u32 s41, s41, %d" % FLAGS)
    A("v_mov_b32 v9, 0")
    A("buffer_store_dword v9, v8, s[4:7], s41 offen")
    A("s_mul_i32 s42, s43, %d" % (28 * KB))
    A("s_mul_i32 s41, s36, %d" % (7 * KB))
    A("s_add_u32 s42, s42, s41")
    A("s_add_u32 s42, s42, %d" % XF)
    A.wait_all_vm()
    for ss in range(7):
        if ss == 4:
            A("s_add_u32 s42, s42, 4096")
        A("buffer_store_dwordx4 %s, v1, s[4:7], s42 offen offset:%d" % (v(16 + 4 * ss, 4), (ss % 4) * KB))
    A("v_mov_b32 v10, 0")
    A("v_mov_b32 v11, 0")
    for i in range(28):
        A("v_lshlrev_b32 v8, 16, %s" % v(16 + i))
        A("v_and_b32 v9, 0xffff0000, %s" % v(16 + i))
        A("v_add_f32 v10, v10, v8")
        A("v_fmac_f32 v11, v8, v8")
        A("v_add_f32 v10, v10, v9")
        A("v_fmac_f32 v11, v9, v9")
    A("v_mov_b32 v12, v10")
    A("v_mov_b32 v13, v11")
    A("v_permlane32_swap_b32 v10, v12")
    A("v_permlane32_swap_b32 v11, v13")
    A("v_add_f32 v10, v10, v12")
    A("v_add_f32 v11, v11, v13")
    A("v_lshlrev_b32 v8, 5, v3")
    A("s_lshl_b32 s41, s43, 10")
    A("s_lshl_b32 s40, s36, 3")
    A("s_add_u32 s41, s41, s40")
    A("s_add_u32 s41, s41, %d" % ST)
    A("buffer_store_dwordx2 v[10:11], v8, s[4:7], s41 offen")
    A.label("Lprep_end")
    A("s_endpgm")
    A.raw(kernel_desc("prep_kernel", 96, 96))


sWS, sX, sOUT = 4, 8, 12
sTEAM, sMEM, sWAVE, sTG, sFG = 16, 17, 18, 19, 20
sT0, sT1, sT2, sT3 = 21, 22, 23, 24
sCNT = 25
sGTG = 26
sOTG = 27
sMYFLAG = 28
sC0, sC1, sC2, sC3 = 30, 31, 32, 33
sEX = 40
vLANE, vL16, vL16b, vL16c = 0, 1, 2, 3
vT = 4
vQ = 8
vRES = 240
vPA, vPB = 248, 249
vRED_R = 250
vRED_W = 251
vXST = 252
vOUTO = 253
vSTO = 254
vSTL = 255

_lbl = [0]


def ldsaddr(off):
    if off < 65536:
        return v(vL16), off
    if off < 131072:
        return v(vL16b), off - 65536
    return v(vL16c), off - 131072


def poll(A, voff, val):
    _lbl[0] += 1
    L = "Lpoll%d" % _lbl[0]
    A("s_mov_b32 %s, 200000" % s(sCNT))
    A.label(L)
    A("buffer_load_dword %s, %s, %s, 0 offen sc1" % (v(vT), v(voff), s(sWS, 4)))
    A.wait_all_vm()
    A("v_cmp_gt_u32 vcc, %d, %s" % (val, v(vT)))
    A("s_nop 1")
    A("s_cbranch_vccz %sd" % L)
    A("s_sub_u32 %s, %s, 1" % (s(sCNT), s(sCNT)))
    A("s_cmp_lg_u32 %s, 0" % s(sCNT))
    A("s_cbranch_scc1 %s" % L)
    A.label(L + "d")


def signal(A, val):
    A.wait_all_vm()
    A("v_mov_b32 %s, %d" % (v(vT), val))
    A("v_mov_b32 %s, 0" % v(vT + 1))
    A("s_mov_b64 exec, 1")
    A("buffer_store_dword %s, %s, %s, %s offen sc1" % (v(vT), v(vT + 1), s(sWS, 4), s(sMYFLAG)))
    A("s_mov_b64 exec, -1")


def dma(A, ws_off_sreg_expr, nper, lds_base):
    toks = []
    for i in range(nper):
        if i % 4 == 0:
            A("s_mov_b32 m0, %s" % s(sT1))
        toks.append(A("buffer_load_dwordx4 %s, %s, %s offen offset:%d lds" % (v(vL16), s(sWS, 4), s(sT0), (i % 4) * KB)))
        if i % 4 == 3 and i + 1 < nper:
            A("s_add_u32 %s, %s, 4096" % (s(sT0), s(sT0)))
            A("s_add_u32 %s, %s, 4096" % (s(sT1), s(sT1)))
    return toks


def dma_run(A, gbase_const, mem_stride, nper, lds_base):
    A("s_mul_i32 %s, %s, %d" % (s(sT0), s(sMEM), mem_stride))
    A("s_mul_i32 %s, %s, %d" % (s(sT1), s(sWAVE), nper * KB))
    A("s_add_u32 %s, %s, %s" % (s(sT0), s(sT0), s(sT1)))
    A("s_add_u32 %s, %s, %d" % (s(sT0), s(sT0), gbase_const))
    A("s_add_u32 %s, %s, %d" % (s(sT1), s(sT1), lds_base))
    return dma(A, None, nper, lds_base)


def load_frags(A, dsts, sbase, sc1=False):
    toks = []
    for i, d in enumerate(dsts):
        toks.append(A("buffer_load_dwordx4 %s, %s, %s, %s offen offset:%d%s" % (d, v(vL16), s(sWS, 4), s(sbase), (i % 4) * KB, " sc1" if sc1 else "")))
        if i % 4 == 3 and i + 1 < len(dsts):
            A("s_add_u32 %s, %s, 4096" % (s(sbase), s(sbase)))
    return toks


def round_bf16(A, dst, src, tmp=None):
    A("v_cvt_pk_bf16_f32 %s, %s, %s" % (v(dst), v(src), v(src)))
    A("v_lshlrev_b32 %s, 16, %s" % (v(dst), v(dst)))


def ln_stats(A, vs, va_, vaug):
    A("v_add_f32 %s, %s, %s" % (v(vs), v(vs), v(vs + 2)))
    A("v_add_f32 %s, %s, %s" % (v(vs + 4), v(vs + 4), v(vs + 6)))
    A("v_add_f32 %s, %s, %s" % (v(vs + 1), v(vs + 1), v(vs + 3)))
    A("v_add_f32 %s, %s, %s" % (v(vs + 5), v(vs + 5), v(vs + 7)))
    A("v_add_f32 %s, %s, %s" % (v(vs), v(vs), v(vs + 4)))
    A("v_add_f32 %s, %s, %s" % (v(vs + 1), v(vs + 1), v(vs + 5)))
    A("v_mul_f32 %s, 0x%x, %s" % (v(vs), f32bits(1.0 / 448), v(vs)))
    A("v_mul_f32 %s, 0x%x, %s" % (v(vs + 1), f32bits(1.0 / 448), v(vs + 1)))
    A("v_fma_f32 %s, -%s, %s, %s" % (v(vs + 1), v(vs), v(vs), v(vs + 1)))
    A("v_max_f32 %s, 0, %s" % (v(vs + 1), v(vs + 1)))
    round_bf16(A, vs + 1, vs + 1)
    A("v_add_f32 %s, 0x%x, %s" % (v(vs + 1), f32bits(1e-5), v(vs + 1)))
    round_bf16(A, vs + 1, vs + 1)
    A("v_sqrt_f32 %s, %s" % (v(vs + 1), v(vs + 1)))
    round_bf16(A, vs + 1, vs + 1)
    A("v_rcp_f32 %s, %s" % (v(va_), v(vs + 1)))
    A("v_sub_f32 %s, 0, %s" % (v(vs), v(vs)))
    A("v_cvt_pk_bf16_f32 %s, %s, %s" % (v(vs + 2), v(vs), v(vs)))
    A("v_and_b32 %s, 0xffff, %s" % (v(vs + 3), v(vs + 2)))
    A("v_mov_b32 %s, 0" % v(vaug + 2))
    A("v_mov_b32 %s, 0" % v(vaug + 3))
    A("v_cmp_gt_u32 vcc, 32, %s" % v(vLANE))
    A("v_cndmask_b32 %s, %s, %s, vcc" % (v(vaug), v(vaug + 2), v(vs + 2)))
    A("v_cndmask_b32 %s, %s, %s, vcc" % (v(vaug + 1), v(vaug + 2), v(vs + 3)))


def load_x_and_stats(A, stage, vs):
    A("s_lshl_b32 %s, %s, 10" % (s(sT2), s(sGTG)))
    A("s_add_u32 %s, %s, %d" % (s(sT2), s(sT2), ST + stage * ST_SZ))
    st = [A("buffer_load_dwordx4 %s, %s, %s, %s offen sc1" % (v(vs, 4), v(vSTL), s(sWS, 4), s(sT2))),
          A("buffer_load_dwordx4 %s, %s, %s, %s offen offset:16 sc1" % (v(vs + 4, 4), v(vSTL), s(sWS, 4), s(sT2)))]
    A("s_mul_i32 %s, %s, %d" % (s(sT0), s(sGTG), 28 * KB))
    A("s_add_u32 %s, %s, %d" % (s(sT0), s(sT0), XF + stage * XF_SZ))
    xt = load_frags(A, [a(4 * i, 4) for i in range(28)], sT0, sc1=True)
    return xt, st


MF32 = "v_mfma_f32_32x32x16_bf16"
MF16 = "v_mfma_f32_16x16x32_bf16"


def phase1(A, L, st8):
    A.comment("================ P1 layer %d" % L)
    if L > 0:
        poll(A, vPA, 5 * L)
    vS, vA_, vAUG = 64, 72, 76
    accQ, accK, accV = 16, 32, 48
    WB = 200
    xt, stt = load_x_and_stats(A, 2 * L, vS)
    A.wait(st8["wqkv"])
    A("s_barrier")
    rd = {}

    def rdw(sidx):
        for p in range(3):
            r, o = ldsaddr((p * 29 + sidx) * KB)
            rd[(sidx, p)] = A("ds_read_b128 %s, %s offset:%d" % (v(WB + ((sidx % 2) * 3 + p) * 4, 4), r, o))

    rdw(0)
    for sidx in range(29):
        if sidx + 1 < 29:
            rdw(sidx + 1)
        if sidx == 20:
            A.wait(stt)
            ln_stats(A, vS, vA_, vAUG)
            A("v_and_b32 %s, 31, %s" % (v(vT), v(vLANE)))
            A("v_lshlrev_b32 %s, 2, %s" % (v(vT), v(vT)))
            A("s_lshl_b32 %s, %s, 7" % (s(sT2), s(sWAVE)))
            A("s_add_u32 %s, %s, %d" % (s(sT2), s(sT2), VST))
            A("v_add_u32 %s, %s, %s" % (v(vT), s(sT2), v(vT)))
            wtok = A("ds_write_b32 %s, %s" % (v(vT), v(vA_)))
            A("v_lshrrev_b32 %s, 5, %s" % (v(vT + 1), v(vLANE)))
            A("v_lshlrev_b32 %s, 4, %s" % (v(vT + 1), v(vT + 1)))
            A("v_add_u32 %s, %s, %s" % (v(vT + 1), s(sT2), v(vT + 1)))
            A.wait(wtok)
            avt = [A("ds_read_b128 %s, %s offset:%d" % (v(80 + 4 * q, 4), v(vT + 1), q * 32)) for q in range(4)]
        X = a(4 * sidx, 4) if sidx < 28 else v(vAUG, 4)
        if sidx < 28:
            A.wait(xt[sidx])
        A.wait(rd[(sidx, 0)], rd[(sidx, 1)], rd[(sidx, 2)])
        w = [v(WB + ((sidx % 2) * 3 + p) * 4, 4) for p in range(3)]
        c = lambda acc: ("0" if sidx == 0 else v(acc, 16))
        A("%s %s, %s, %s, %s" % (MF32, v(accQ, 16), w[0], X, c(accQ)))
        A("%s %s, %s, %s, %s" % (MF32, v(accK, 16), w[1], X, c(accK)))
        A("%s %s, %s, %s, %s" % (MF32, v(accV, 16), X, w[2], c(accV)))
    A.wait(avt)
    for r in range(16):
        A("v_mul_f32 %s, %s, %s" % (v(accQ + r), v(accQ + r), v(vA_)))
    for r in range(16):
        A("v_mul_f32 %s, %s, %s" % (v(accK + r), v(accK + r), v(vA_)))
    for r in range(16):
        A("v_mul_f32 %s, %s, %s" % (v(accV + r), v(accV + r), v(80 + r)))
    A("s_mov_b32 %s, 0" % s(sEX))
    A("s_mov_b32 %s, -1" % s(sEX + 1))
    A("s_mov_b64 exec, %s" % s(sEX, 2))
    A("v_mov_b32 %s, 1.0" % v(accQ + 12))
    A("s_mov_b64 exec, -1")
    vK, vV = 96, 104
    for i in range(8):
        A("v_cvt_pk_bf16_f32 %s, %s, %s" % (v(vQ + i), v(accQ + 2 * i), v(accQ + 2 * i + 1)))
    for i in range(8):
        A("v_cvt_pk_bf16_f32 %s, %s, %s" % (v(vK + i), v(accK + 2 * i), v(accK + 2 * i + 1)))
    for i in range(8):
        A("v_cvt_pk_bf16_f32 %s, %s, %s" % (v(vV + i), v(accV + 2 * i), v(accV + 2 * i + 1)))
    A("s_mov_b32 %s, 0x10000000" % s(sEX))
    A("s_mov_b32 %s, 0x10000000" % s(sEX + 1))
    A("s_mov_b64 exec, %s" % s(sEX, 2))
    for i in range(8):
        A("v_mov_b32 %s, 0x3f803f80" % v(vV + i))
    A("s_mov_b64 exec, -1")
    A("s_lshl_b32 %s, %s, 4" % (s(sT0), s(sTEAM)))
    A("s_add_u32 %s, %s, %s" % (s(sT0), s(sT0), s(sMEM)))
    A("s_lshl_b32 %s, %s, 2" % (s(sT0), s(sT0)))
    A("s_add_u32 %s, %s, %s" % (s(sT0), s(sT0), s(sWAVE)))
    A("s_lshl_b32 %s, %s, 12" % (s(sT0), s(sT0)))
    A("s_add_u32 %s, %s, %d" % (s(sT0), s(sT0), KV + L * KV_SZ))
    for i in range(4):
        A("buffer_store_dwordx4 %s, %s, %s, %s offen offset:%d sc1" % (v(vK + 4 * i, 4), v(vL16), s(sWS, 4), s(sT0), i * KB))
    A("s_lshl_b32 %s, %s, 12" % (s(sT1), s(sWAVE)))
    A("v_add_u32 %s, %s, %s" % (v(vT + 2), s(sT1), v(vL16b)))
    for i in range(4):
        A("ds_write_b128 %s, %s offset:%d" % (v(vT + 2), v(vK + 4 * i, 4), REGB - 65536 + 8 * 4096 + i * KB))
    signal(A, 5 * L + 1)


def phase2(A, L, st8):
    A.comment("================ P2 layer %d" % L)
    A("s_lshr_b32 %s, %s, 1" % (s(sT0), s(sWAVE)))
    A("s_add_u32 %s, %s, %s" % (s(sT0), s(sT0), s(sTEAM)))
    A("s_lshl_b32 %s, %s, 1" % (s(sT1), s(sWAVE)))
    A("s_and_b32 %s, %s, 3" % (s(sT1), s(sT1)))
    NB = 64
    _lbl[0] += 1
    Lf = "Lnofill%d" % _lbl[0]
    Lj = "Lnbjoin%d" % _lbl[0]
    A("s_cmp_ge_u32 %s, 2" % s(sT0))
    A("s_cbranch_scc1 %s" % Lf)
    for i in range(32):
        A("v_mov_b32 %s, 0" % v(NB + i))
    A("s_mov_b32 %s, 0" % s(sEX))
    A("s_mov_b32 %s, -1" % s(sEX + 1))
    A("s_mov_b64 exec, %s" % s(sEX, 2))
    A("v_mov_b32 %s, 0xce6e" % v(NB + 4 + 2))
    A("v_mov_b32 %s, 0xce6e" % v(NB + 16 + 4 + 2))
    A("s_mov_b64 exec, -1")
    A("s_branch %s" % Lj)
    A.label(Lf)
    A("s_sub_u32 %s, %s, 2" % (s(sT0), s(sT0)))
    A("s_lshl_b32 %s, %s, 8" % (s(sT2), s(sT0)))
    A("s_lshl_b32 %s, %s, 4" % (s(sT3), s(sMEM)))
    A("s_add_u32 %s, %s, %s" % (s(sT2), s(sT2), s(sT3)))
    A("s_lshl_b32 %s, %s, 2" % (s(sT3), s(sT1)))
    A("s_add_u32 %s, %s, %s" % (s(sT2), s(sT2), s(sT3)))
    A("s_add_u32 %s, %s, %d" % (s(sT2), s(sT2), FLAGS))
    A("v_and_b32 %s, 1, %s" % (v(vT + 3), v(vLANE)))
    A("v_lshlrev_b32 %s, 2, %s" % (v(vT + 3), v(vT + 3)))
    A("v_add_u32 %s, %s, %s" % (v(vT + 3), s(sT2), v(vT + 3)))
    poll(A, vT + 3, 5 * L + 1)
    A("s_lshl_b32 %s, %s, 4" % (s(sT0), s(sT0)))
    A("s_add_u32 %s, %s, %s" % (s(sT0), s(sT0), s(sMEM)))
    A("s_lshl_b32 %s, %s, 2" % (s(sT0), s(sT0)))
    A("s_add_u32 %s, %s, %s" % (s(sT0), s(sT0), s(sT1)))
    A("s_lshl_b32 %s, %s, 12" % (s(sT0), s(sT0)))
    A("s_add_u32 %s, %s, %d" % (s(sT0), s(sT0), KV + L * KV_SZ))
    load_frags(A, [v(NB + 4 * i, 4) for i in range(8)], sT0, sc1=True)
    A.wait_all_vm()
    A.label(Lj)
    A("s_lshl_b32 %s, %s, 13" % (s(sT1), s(sWAVE)))
    A("v_add_u32 %s, %s, %s" % (v(vT + 2), s(sT1), v(vL16b)))
    for i in range(8):
        A("ds_write_b128 %s, %s offset:%d" % (v(vT + 2), v(NB + 4 * i, 4), REGB - 65536 + i * KB))
    A.wait_all_lg()
    A("s_barrier")
    A("s_lshl_b32 %s, %s, 2" % (s(sT0), s(sFG)))
    A("s_add_u32 %s, %s, %s" % (s(sT0), s(sT0), s(sWAVE)))
    A("s_mul_i32 %s, %s, %d" % (s(sT0), s(sT0), 28 * KB))
    A("s_add_u32 %s, %s, %d" % (s(sT0), s(sT0), WO))
    st8["wo"] = load_frags(A, [a(112 + 4 * i, 4) for i in range(28)], sT0)
    st8["wgu012"] = dma_run(A, WGU, 7 * 29 * KB, 22, 0)
    SC = 64
    KBUF = 208
    accO = 16
    A("s_lshl_b32 %s, %s, 12" % (s(sT1), s(sWAVE)))
    A("v_add_u32 %s, %s, %s" % (v(vT + 2), s(sT1), v(vL16b)))
    base = REGB - 65536
    A("v_and_b32 %s, 31, %s" % (v(vT), v(vLANE)))
    A("v_lshrrev_b32 %s, 5, %s" % (v(vT + 1), v(vLANE)))
    A("v_lshlrev_b32 %s, 2, %s" % (v(vT + 1), v(vT + 1)))
    A("v_sub_u32 %s, %s, %s" % (v(vT), v(vT), v(vT + 1)))
    A("v_mov_b32 %s, 0" % v(vT + 1))
    A("v_mov_b32 %s, 0x%x" % (v(vT + 3), f32bits(-1e9)))
    for r in range(16):
        A("v_cmp_gt_i32 vcc, %d, %s" % (8 * (r >> 2) + (r & 3), v(vT)))
        A("v_cndmask_b32 %s, %s, %s, vcc" % (v(SC + r), v(vT + 3), v(vT + 1)))
        A("v_cndmask_b32 %s, %s, %s, vcc" % (v(SC + 128 + r), v(vT + 1), v(vT + 3)))
    rd = {}

    def rdk(t):
        for st_ in range(2):
            rd[(t, st_)] = A("ds_read_b128 %s, %s offset:%d" % (v(KBUF + ((t % 2) * 2 + st_) * 4, 4), v(vT + 2), base + t * 4096 + st_ * KB))

    rdk(0)
    for t in range(9):
        if t + 1 < 9:
            rdk(t + 1)
        A.wait(rd[(t, 0)], rd[(t, 1)])
        acc = v(SC + 16 * t, 16)
        c0 = acc if t in (0, 8) else "0"
        A("%s %s, %s, %s, %s" % (MF32, acc, v(KBUF + ((t % 2) * 2) * 4, 4), v(vQ, 4), c0))
        A("%s %s, %s, %s, %s" % (MF32, acc, v(KBUF + ((t % 2) * 2 + 1) * 4, 4), v(vQ + 4, 4), acc))
    vM = 32
    A("v_max3_f32 %s, %s, %s, %s" % (v(vM), v(SC), v(SC + 1), v(SC + 2)))
    A("v_max3_f32 %s, %s, %s, %s" % (v(vM + 1), v(SC + 3), v(SC + 4), v(SC + 5)))
    i = 6
    k = 0
    while i < 144:
        A("v_max3_f32 %s, %s, %s, %s" % (v(vM + k), v(vM + k), v(SC + i), v(SC + i + 1)))
        i += 2
        k ^= 1
    A("v_max_f32 %s, %s, %s" % (v(vM), v(vM), v(vM + 1)))
    A("v_mov_b32 %s, %s" % (v(vM + 1), v(vM)))
    A("v_permlane32_swap_b32 %s, %s" % (v(vM), v(vM + 1)))
    A("v_max_f32 %s, %s, %s" % (v(vM), v(vM), v(vM + 1)))
    cs = (DH ** -0.5) * math.log2(math.e)
    A("s_mov_b32 %s, 0x%x" % (s(sC0), f32bits(cs)))
    A("v_mul_f32 %s, %s, %s" % (v(vM), s(sC0), v(vM)))
    rd = {}

    def rdv(t):
        for st_ in range(2):
            rd[(t, st_)] = A("ds_read_b128 %s, %s offset:%d" % (v(KBUF + ((t % 2) * 2 + st_) * 4, 4), v(vT + 2), base + t * 4096 + 2048 + st_ * KB))

    rdv(0)
    for t in range(9):
        b = SC + 16 * t
        for r in range(16):
            A("v_fma_f32 %s, %s, %s, -%s" % (v(b + r), v(b + r), s(sC0), v(vM)))
        for r in range(16):
            A("v_exp_f32 %s, %s" % (v(b + r), v(b + r)))
        for i in range(8):
            A("v_cvt_pk_bf16_f32 %s, %s, %s" % (v(b + i), v(b + 2 * i), v(b + 2 * i + 1)))
        A.wait(rd[(t, 0)], rd[(t, 1)])
        A("%s %s, %s, %s, %s" % (MF32, v(accO, 16), v(KBUF + ((t % 2) * 2) * 4, 4), v(b, 4), "0" if t == 0 else v(accO, 16)))
        A("%s %s, %s, %s, %s" % (MF32, v(accO, 16), v(KBUF + ((t % 2) * 2 + 1) * 4, 4), v(b + 4, 4), v(accO, 16)))
        if t + 1 < 9:
            rdv(t + 1)
    A("v_mov_b32 %s, %s" % (v(vM), v(accO + 12)))
    A("v_mov_b32 %s, %s" % (v(vM + 1), v(accO + 12)))
    A("v_permlane32_swap_b32 %s, %s" % (v(vM), v(vM + 1)))
    A("v_rcp_f32 %s, %s" % (v(vM + 1), v(vM + 1)))
    for r in range(16):
        A("v_mul_f32 %s, %s, %s" % (v(accO + r), v(accO + r), v(vM + 1)))
    for i in range(8):
        A("v_cvt_pk_bf16_f32 %s, %s, %s" % (v(accO + i), v(accO + 2 * i), v(accO + 2 * i + 1)))
    A("v_and_b32 %s, 15, %s" % (v(vT), v(vLANE)))
    A("v_lshlrev_b32 %s, 4, %s" % (v(vT), v(vT)))
    A("v_lshrrev_b32 %s, 5, %s" % (v(vT + 1), v(vLANE)))
    A("v_lshl_add_u32 %s, %s, 8, %s" % (v(vT), v(vT + 1), v(vT)))
    A("v_bfe_u32 %s, %s, 4, 1" % (v(vT + 1), v(vLANE)))
    A("v_lshl_add_u32 %s, %s, 14, %s" % (v(vT), v(vT + 1), v(vT)))
    A("s_lshl_b32 %s, %s, 5" % (s(sT0), s(sGTG)))
    A("s_add_u32 %s, %s, %s" % (s(sT0), s(sT0), s(sMEM)))
    A("s_lshl_b32 %s, %s, 10" % (s(sT0), s(sT0)))
    A("s_add_u32 %s, %s, %d" % (s(sT0), s(sT0), OB + L * OB_SZ))
    for c in range(2):
        A("buffer_store_dwordx4 %s, %s, %s, %s offen offset:%d sc1" % (v(accO + 4 * c, 4), v(vT), s(sWS, 4), s(sT0), c * 512))
    signal(A, 5 * L + 2)


def ksplit_epilogue(A, acc, stage_out, flagval, final):
    A("s_barrier")
    for tt in range(2):
        for ft in range(7):
            A("ds_write_b128 %s, %s offset:%d" % (v(vRED_W), v(acc + (tt * 7 + ft) * 4, 4), tt * 16 * RED_PITCH + ft * 64))
    A.wait_all_lg()
    A("s_barrier")
    R = 64
    for w in range(4):
        for c in range(4):
            A("ds_read_b128 %s, %s offset:%d" % (v(R + (w * 4 + c) * 4, 4), v(vRED_R), w * RED_WAVE + c * 16))
    A.wait_all_lg()
    for i in range(16):
        A("v_add_f32 %s, %s, %s" % (v(R + i), v(R + i), v(R + 16 + i)))
        A("v_add_f32 %s, %s, %s" % (v(R + 32 + i), v(R + 32 + i), v(R + 48 + i)))
    for i in range(16):
        A("v_add_f32 %s, %s, %s" % (v(R + i), v(R + i), v(R + 32 + i)))
    for i in range(8):
        A("v_cvt_pk_bf16_f32 %s, %s, %s" % (v(R + 16 + i), v(R + 2 * i), v(R + 2 * i + 1)))
    for i in range(8):
        A("v_lshlrev_b32 %s, 16, %s" % (v(R + 2 * i), v(R + 16 + i)))
        A("v_and_b32 %s, 0xffff0000, %s" % (v(R + 2 * i + 1), v(R + 16 + i)))
        A("v_lshlrev_b32 %s, 16, %s" % (v(R + 32 + 2 * i), v(vRES + i)))
        A("v_and_b32 %s, 0xffff0000, %s" % (v(R + 32 + 2 * i + 1), v(vRES + i)))
    for i in range(16):
        A("v_add_f32 %s, %s, %s" % (v(R + i), v(R + i), v(R + 32 + i)))
    for i in range(8):
        A("v_cvt_pk_bf16_f32 %s, %s, %s" % (v(vRES + i), v(R + 2 * i), v(R + 2 * i + 1)))
    A("s_mov_b32 %s, 0x7f7f7f7f" % s(sEX))
    A("s_mov_b32 %s, 0x7f7f7f7f" % s(sEX + 1))
    if final:
        A("s_mov_b64 exec, %s" % s(sEX, 2))
        for c in range(2):
            A("buffer_store_dwordx4 %s, %s, %s, 0 offen offset:%d" % (v(vRES + 4 * c, 4), v(vOUTO), s(sOUT, 4), c * 16))
        A("s_mov_b64 exec, -1")
        return
    A("s_mov_b32 %s, %d" % (s(sT0), XF + stage_out * XF_SZ))
    A("s_mov_b64 exec, %s" % s(sEX, 2))
    for c in range(2):
        A("buffer_store_dwordx4 %s, %s, %s, %s offen offset:%d sc1" % (v(vRES + 4 * c, 4), v(vXST), s(sWS, 4), s(sT0), c * 512))
    A("s_mov_b64 exec, -1")
    A("v_mov_b32 %s, 0" % v(R + 48))
    A("v_mov_b32 %s, 0" % v(R + 49))
    A("s_mov_b64 exec, %s" % s(sEX, 2))
    for i in range(8):
        A("v_lshlrev_b32 %s, 16, %s" % (v(R), v(vRES + i)))
        A("v_and_b32 %s, 0xffff0000, %s" % (v(R + 1), v(vRES + i)))
        A("v_add_f32 %s, %s, %s" % (v(R + 48), v(R + 48), v(R)))
        A("v_fmac_f32 %s, %s, %s" % (v(R + 49), v(R), v(R)))
        A("v_add_f32 %s, %s, %s" % (v(R + 48), v(R + 48), v(R + 1)))
        A("v_fmac_f32 %s, %s, %s" % (v(R + 49), v(R + 1), v(R + 1)))
    A("s_mov_b64 exec, -1")
    for mod in ("quad_perm:[1,0,3,2]", "quad_perm:[2,3,0,1]", "row_half_mirror"):
        for q in (48, 49):
            A("v_add_f32_dpp %s, %s, %s %s row_mask:0xf bank_mask:0xf" % (v(R + q + 2), v(R + q), v(R + q), mod))
        for q in (48, 49):
            A("v_mov_b32 %s, %s" % (v(R + q), v(R + q + 2)))
    A("s_mov_b32 %s, 0x01010101" % s(sEX))
    A("s_mov_b32 %s, 0x01010101" % s(sEX + 1))
    A("s_mov_b32 %s, %d" % (s(sT0), ST + stage_out * ST_SZ))
    A("s_mov_b64 exec, %s" % s(sEX, 2))
    A("buffer_store_dwordx2 %s, %s, %s, %s offen sc1" % (v(R + 48, 2), v(vSTO), s(sWS, 4), s(sT0)))
    A("s_mov_b64 exec, -1")
    signal(A, flagval)


def phase3(A, L, st8):
    A.comment("================ P3 layer %d" % L)
    poll(A, vPB, 5 * L + 2)
    XO, acc = 160, 96
    xt = {}
    for tt in range(2):
        A("s_lshl_b32 %s, %s, 5" % (s(sT0), s(sOTG)))
        A("s_lshl_b32 %s, %s, 2" % (s(sT1), s(sWAVE)))
        A("s_add_u32 %s, %s, %s" % (s(sT0), s(sT0), s(sT1)))
        A("s_lshl_b32 %s, %s, 10" % (s(sT0), s(sT0)))
        A("s_add_u32 %s, %s, %d" % (s(sT0), s(sT0), OB + L * OB_SZ + tt * 16 * KB))
        tk = load_frags(A, [v(XO + (tt * 4 + ks) * 4, 4) for ks in range(4)], sT0, sc1=True)
        for ks in range(4):
            xt[(tt, ks)] = tk[ks]
    A.wait(st8["wo"])
    for tt in range(2):
        for ks in range(4):
            A.wait(xt[(tt, ks)])
            for ft in range(7):
                d = v(acc + (tt * 7 + ft) * 4, 4)
                A("%s %s, %s, %s, %s" % (MF16, d, a(112 + (ks * 7 + ft) * 4, 4), v(XO + (tt * 4 + ks) * 4, 4), "0" if ks == 0 else d))
    ksplit_epilogue(A, acc, 2 * L + 1, 5 * L + 3, False)
    A("s_barrier")
    st8["wgu34"] = dma_run(A, WGU + 3 * 29 * KB, 7 * 29 * KB, 15, REGB)


def gelu_tile(A, acc, vA_, out):
    T = acc
    for r in range(16):
        A("v_mul_f32 %s, %s, %s" % (v(acc + r), v(acc + r), v(vA_)))
    tmp = out + 4
    for r in range(8):
        A("v_mul_f32 %s, %s, %s" % (v(tmp + r), v(acc + r), v(acc + r)))
    for r in range(8):
        A("v_fma_f32 %s, %s, %s, %s" % (v(tmp + r), v(tmp + r), s(sC1), v(tmp + 8)))
    for r in range(8):
        A("v_mul_f32 %s, %s, %s" % (v(tmp + r), v(tmp + r), v(acc + r)))
    for r in range(8):
        A("v_exp_f32 %s, %s" % (v(tmp + r), v(tmp + r)))
    for r in range(8):
        A("v_add_f32 %s, 1.0, %s" % (v(tmp + r), v(tmp + r)))
    for r in range(8):
        A("v_rcp_f32 %s, %s" % (v(tmp + r), v(tmp + r)))
    for r in range(8):
        A("v_mul_f32 %s, %s, %s" % (v(acc + r), v(acc + r), v(acc + 8 + r)))
    for r in range(8):
        A("v_mul_f32 %s, %s, %s" % (v(acc + r), v(acc + r), v(tmp + r)))
    for i in range(4):
        A("v_cvt_pk_bf16_f32 %s, %s, %s" % (v(out + i), v(acc + 2 * i), v(acc + 2 * i + 1)))


def phase4(A, L, st8):
    A.comment("================ P4 layer %d" % L)
    poll(A, vPA, 5 * L + 3)
    vS, vA_, vAUG = 64, 72, 76
    WB = 200
    OUT = 80
    accs = [16, 32, 48]
    xt, stt = load_x_and_stats(A, 2 * L + 1, vS)
    A.wait(st8["wgu012"], st8["wgu34"])
    A("s_barrier")
    c0 = -2.0 * math.sqrt(2.0 / math.pi) * math.log2(math.e)
    A("s_mov_b32 %s, 0x%x" % (s(sC1), f32bits(c0 * 0.044715)))
    A("v_mov_b32 %s, 0x%x" % (v(OUT + 4 + 8), f32bits(c0)))
    A("v_and_b32 %s, 15, %s" % (v(vT + 2), v(vLANE)))
    A("v_lshlrev_b32 %s, 4, %s" % (v(vT + 2), v(vT + 2)))
    A("v_lshrrev_b32 %s, 5, %s" % (v(vT + 1), v(vLANE)))
    A("v_lshl_add_u32 %s, %s, 8, %s" % (v(vT + 2), v(vT + 1), v(vT + 2)))
    A("v_bfe_u32 %s, %s, 4, 1" % (v(vT + 1), v(vLANE)))
    A("v_mul_u32_u24 %s, %d, %s" % (v(vT + 1), 112 * 512, v(vT + 1)))
    A("v_add_u32 %s, %s, %s" % (v(vT + 2), v(vT + 2), v(vT + 1)))
    A("s_mul_i32 %s, %s, %d" % (s(sT3), s(sGTG), 2 * 112 * 512))
    A("s_mul_i32 %s, %s, %d" % (s(sT2), s(sMEM), 7 * 512))
    A("s_add_u32 %s, %s, %s" % (s(sT3), s(sT3), s(sT2)))
    A("s_add_u32 %s, %s, %d" % (s(sT3), s(sT3), HB + L * HB_SZ))
    groups = [[0, 1, 2], [3, 4], [5, 6]]
    slot_of = {0: 0, 1: 1, 2: 2, 3: 3, 4: 4, 5: 0, 6: 1}
    first = True
    for gi, grp in enumerate(groups):
        n = len(grp)
        rd = {}

        def rdw(sidx):
            for p, t in enumerate(grp):
                r, o = ldsaddr(slot_addr(slot_of[t]) + sidx * KB)
                rd[(sidx, p)] = A("ds_read_b128 %s, %s offset:%d" % (v(WB + ((sidx % 2) * 3 + p) * 4, 4), r, o))

        if gi == 2:
            A.wait(st8["wgu56"])
            A("s_barrier")
        rdw(0)
        for sidx in range(29):
            if sidx + 1 < 29:
                rdw(sidx + 1)
            if first and sidx == 20:
                A.wait(stt)
                ln_stats(A, vS, vA_, vAUG)
            X = a(4 * sidx, 4) if sidx < 28 else v(vAUG, 4)
            if sidx < 28:
                A.wait(xt[sidx])
            A.wait(*[rd[(sidx, p)] for p in range(n)])
            for p in range(n):
                d = v(accs[p], 16)
                A("%s %s, %s, %s, %s" % (MF32, d, v(WB + ((sidx % 2) * 3 + p) * 4, 4), X, "0" if sidx == 0 else d))
        if gi == 0:
            A("s_barrier")
            st8["wgu56"] = dma_run(A, WGU + 5 * 29 * KB, 7 * 29 * KB, 15, 0)
            A("s_lshl_b32 %s, %s, 2" % (s(sT0), s(sFG)))
            A("s_add_u32 %s, %s, %s" % (s(sT0), s(sT0), s(sWAVE)))
            A("s_mul_i32 %s, %s, %d" % (s(sT0), s(sT0), 98 * KB))
            A("s_add_u32 %s, %s, %d" % (s(sT0), s(sT0), WD))
            st8["wd"] = load_frags(A, [a(112 + 4 * i, 4) for i in range(36)], sT0)
        first = False
        for p, t in enumerate(grp):
            gelu_tile(A, accs[p], vA_, OUT)
            A("buffer_store_dwordx4 %s, %s, %s, %s offen offset:%d sc1" % (v(OUT, 4), v(vT + 2), s(sWS, 4), s(sT3), t * 512))
    signal(A, 5 * L + 4)


def phase5(A, L, st8):
    A.comment("================ P5 layer %d" % L)
    if L == 0:
        A("s_barrier")
        st8["wqkv"] = dma_run(A, WQKV, 88 * KB, 22, 0)
    acc = 16
    RING, NR = 80, 36
    A("s_lshl_b32 %s, %s, 2" % (s(sT3), s(sFG)))
    A("s_add_u32 %s, %s, %s" % (s(sT3), s(sT3), s(sWAVE)))
    A("s_mul_i32 %s, %s, %d" % (s(sT3), s(sT3), 98 * KB))
    A("s_add_u32 %s, %s, %d" % (s(sT3), s(sT3), WD + 36 * KB))
    wt = {i: st8["wd"][i] for i in range(36)}
    wreg = {i: a(112 + 4 * i, 4) for i in range(36)}
    nxt = [36]

    def issue_w(reg):
        i = nxt[0]
        k = (i - 36) % 4
        wt[i] = A("buffer_load_dwordx4 %s, %s, %s, %s offen offset:%d" % (reg, v(vL16), s(sWS, 4), s(sT3), k * KB))
        wreg[i] = reg
        if k == 3:
            A("s_add_u32 %s, %s, 4096" % (s(sT3), s(sT3)))
        nxt[0] += 1

    for i in range(NR):
        issue_w(v(RING + 4 * i, 4))
    poll(A, vPB, 5 * L + 4)
    xt = {}
    for tt in range(2):
        A("s_mul_i32 %s, %s, %d" % (s(sT0), s(sOTG), 2 * 112 * 512))
        A("s_mul_i32 %s, %s, %d" % (s(sT1), s(sWAVE), 14 * KB))
        A("s_add_u32 %s, %s, %s" % (s(sT0), s(sT0), s(sT1)))
        A("s_add_u32 %s, %s, %d" % (s(sT0), s(sT0), HB + L * HB_SZ + tt * 112 * 512))
        tk = load_frags(A, [a((tt * 14 + ks) * 4, 4) for ks in range(14)], sT0, sc1=True)
        for ks in range(14):
            xt[(tt, ks)] = tk[ks]
    for ks in range(14):
        A.wait(xt[(0, ks)], xt[(1, ks)])
        for ft in range(7):
            i = ks * 7 + ft
            A.wait(wt[i])
            for tt in range(2):
                d = v(acc + (tt * 7 + ft) * 4, 4)
                A("%s %s, %s, %s, %s" % (MF16, d, wreg[i], a((tt * 14 + ks) * 4, 4), "0" if ks == 0 else d))
            if nxt[0] < 98 and i >= 1:
                issue_w(wreg[i - 1])
    ksplit_epilogue(A, acc, 2 * L + 2, 5 * L + 5, L == 1)


def gen_main(A, stop_after=None):
    kernel_head(A, "main_kernel")
    A("s_cmp_ge_u32 s2, 256")
    A("s_cbranch_scc1 Lmain_end")
    A("s_load_dwordx2 s[30:31], s[0:1], 0")
    A("s_load_dwordx2 s[32:33], s[0:1], 56")
    A("s_load_dwordx2 s[34:35], s[0:1], 72")
    A("v_lshrrev_b32 v4, 6, v0")
    A("v_and_b32 v0, 63, v0")
    A("v_readfirstlane_b32 %s, v4" % s(sWAVE))
    A("v_lshlrev_b32 %s, 4, v0" % v(vL16))
    A("v_add_u32 %s, 0x10000, %s" % (v(vL16b), v(vL16)))
    A("v_add_u32 %s, 0x20000, %s" % (v(vL16c), v(vL16)))
    A("s_and_b32 %s, s2, 7" % s(sTEAM))
    A("s_lshl_b32 %s, %s, 1" % (s(sTEAM), s(sTEAM)))
    A("s_lshr_b32 %s, s2, 7" % s(sT0))
    A("s_add_u32 %s, %s, %s" % (s(sTEAM), s(sTEAM), s(sT0)))
    A("s_lshr_b32 %s, s2, 3" % s(sMEM))
    A("s_and_b32 %s, %s, 15" % (s(sMEM), s(sMEM)))
    A("s_lshr_b32 %s, %s, 2" % (s(sTG), s(sMEM)))
    A("s_and_b32 %s, %s, 3" % (s(sFG), s(sMEM)))
    A("s_lshl_b32 %s, %s, 2" % (s(sT0), s(sTEAM)))
    A("s_add_u32 %s, %s, %s" % (s(sGTG), s(sT0), s(sWAVE)))
    A("s_add_u32 %s, %s, %s" % (s(sOTG), s(sT0), s(sTG)))
    A("s_lshl_b32 %s, %s, 8" % (s(sT0), s(sTEAM)))
    A("s_add_u32 %s, %s, %d" % (s(sT0), s(sT0), FLAGS))
    A("s_lshl_b32 %s, %s, 4" % (s(sT1), s(sMEM)))
    A("s_add_u32 %s, %s, %s" % (s(sMYFLAG), s(sT0), s(sT1)))
    A("s_lshl_b32 %s, %s, 2" % (s(sT1), s(sWAVE)))
    A("s_add_u32 %s, %s, %s" % (s(sMYFLAG), s(sMYFLAG), s(sT1)))
    A("s_lshl_b32 %s, %s, 6" % (s(sT1), s(sWAVE)))
    A("s_add_u32 %s, %s, %s" % (s(sT0), s(sT0), s(sT1)))
    A("v_and_b32 v4, 15, v0")
    A("v_lshlrev_b32 v4, 2, v4")
    A("v_add_u32 %s, %s, v4" % (v(vPA), s(sT0)))
    A("s_lshl_b32 %s, %s, 2" % (s(sT1), s(sTG)))
    A("s_add_u32 %s, %s, %s" % (s(sT0), s(sT0), s(sT1)))
    A("v_and_b32 v4, 3, v0")
    A("v_lshlrev_b32 v4, 4, v4")
    A("v_add_u32 %s, %s, v4" % (v(vPB), s(sT0)))
    A("v_and_b32 v4, 15, v0")
    A("v_mul_u32_u24 v4, %d, v4" % RED_PITCH)
    A("v_lshrrev_b32 v5, 4, v0")
    A("v_lshl_add_u32 v4, v5, 4, v4")
    A("s_mul_i32 %s, %s, %d" % (s(sT0), s(sWAVE), RED_WAVE))
    A("s_add_u32 %s, %s, %d" % (s(sT0), s(sT0), REGB))
    A("v_add_u32 %s, %s, v4" % (v(vRED_W), s(sT0)))
    A("v_lshrrev_b32 v4, 3, v0")
    A("s_lshl_b32 %s, %s, 3" % (s(sT0), s(sWAVE)))
    A("v_add_u32 v4, %s, v4" % s(sT0))
    A("v_and_b32 v5, 7, v0")
    A("v_min_u32 v5, 6, v5")
    A("v_mul_u32_u24 v6, %d, v4" % RED_PITCH)
    A("v_lshl_add_u32 v6, v5, 6, v6")
    A("v_add_u32 %s, %d, v6" % (v(vRED_R), REGB))
    A("s_mul_i32 %s, %s, %d" % (s(sT0), s(sOTG), 28 * KB))
    A("s_mul_i32 %s, %s, %d" % (s(sT1), s(sFG), 7 * KB))
    A("s_add_u32 %s, %s, %s" % (s(sT0), s(sT0), s(sT1)))
    A("v_lshlrev_b32 v6, 10, v5")
    A("v_lshl_add_u32 v6, v4, 4, v6")
    A("v_add_u32 %s, %s, v6" % (v(vXST), s(sT0)))
    A("s_lshl_b32 %s, %s, 5" % (s(sT0), s(sOTG)))
    A("v_add_u32 v6, %s, v4" % s(sT0))
    A("v_mul_u32_u24 v7, 896, v6")
    A("v_lshl_add_u32 v7, v5, 5, v7")
    A("s_mul_i32 %s, %s, 224" % (s(sT1), s(sFG)))
    A("v_add_u32 %s, %s, v7" % (v(vOUTO), s(sT1)))
    A("v_lshlrev_b32 v7, 5, v6")
    A("s_lshl_b32 %s, %s, 3" % (s(sT1), s(sFG)))
    A("v_add_u32 %s, %s, v7" % (v(vSTO), s(sT1)))
    A("v_and_b32 v7, 31, v0")
    A("v_lshlrev_b32 %s, 5, v7" % v(vSTL))
    A("s_waitcnt lgkmcnt(0)")
    srd(A, sWS, 34, 35, WS_BYTES)
    srd(A, sX, 30, 31, 2048 * 896)
    srd(A, sOUT, 32, 33, 2048 * 896)
    st8 = {}
    st8["wqkv"] = dma_run(A, WQKV, 88 * KB, 22, 0)
    for c in range(2):
        A("buffer_load_dwordx4 %s, %s, %s, 0 offen offset:%d" % (v(vRES + 4 * c, 4), v(vOUTO), s(sX, 4), c * 16))
    n = 0
    for L in range(2):
        for ph in (phase1, phase2, phase3, phase4, phase5):
            ph(A, L, st8)
            n += 1
            if stop_after is not None and n == stop_after:
                A("s_branch Lmain_end")
                break
        else:
            continue
        break
    A.label("Lmain_end")
    A("s_endpgm")
    A.raw(kernel_desc("main_kernel", 512, 256))


def generate(stop_after=None):
    A = Asm()
    A.raw(HEADER.rstrip())
    A.raw("; @launch kernel=prep_kernel grid=(%d,1,1) block=(256,1,1) lds=1024" % PREP_WGS)
    A.raw("; @launch kernel=main_kernel grid=(256,1,1) block=(256,1,1) lds=%d" % LDS_TOTAL)
    A.raw('.amdgcn_target "amdgcn-amd-amdhsa--gfx950"')
    gen_prep(A)
    A2 = Asm()
    gen_main(A2, stop_after)
    sys.stderr.write("main: %d instructions, %d auto nops\n" % (A2.ninst, A2.nops))
    return A.text() + A2.text()


if __name__ == "__main__":
    out = sys.argv[1] if len(sys.argv) > 1 else "interleave_layers__sliding_block__geglu_ffn__prompt.s"
    stop = int(sys.argv[2]) if len(sys.argv) > 2 else None
    open(out, "w").write(generate(stop))
```

```python
import re

_REG = re.compile(r"^(-|\|)?(abs\()?([vas])(\d+|\[(\d+):(\d+)\])\)?\|?$")


def parse_reg(tok):
    tok = tok.strip()
    if tok in ("vcc", "exec", "m0", "scc", "vcc_lo", "vcc_hi", "exec_lo", "exec_hi"):
        base = tok.split("_")[0]
        return [(base, 0)]
    m = _REG.match(tok)
    if not m:
        return []
    f = m.group(3)
    if m.group(5) is not None:
        return [(f, i) for i in range(int(m.group(5)), int(m.group(6)) + 1)]
    return [(f, int(m.group(4)))]


TRANS = ("v_exp_f32", "v_log_f32", "v_rcp_f32", "v_rsq_f32", "v_sqrt_f32", "v_sin_f32", "v_cos_f32")


class Ins:
    __slots__ = ("text", "op", "kind", "reads", "writes", "passes", "srcc", "states", "dpp", "wide_store", "sdata")

    def __init__(self, text):
        self.text = text
        body = text.split(";")[0].strip()
        parts = body.split(None, 1)
        self.op = parts[0]
        rest = parts[1] if len(parts) > 1 else ""
        ops = []
        cur = ""
        depth = 0
        for ch in rest:
            if ch == "[":
                depth += 1
            if ch == "]":
                depth -= 1
            if ch == "," and depth == 0:
                ops.append(cur.strip())
                cur = ""
            else:
                cur += ch
        if cur.strip():
            ops.append(cur.strip())
        mods = []
        if ops:
            toks = ops[-1].split()
            ops[-1] = toks[0] if toks else ""
            mods = toks[1:]
        op = self.op
        self.reads = []
        self.writes = []
        self.passes = 0
        self.srcc = []
        self.states = 1
        self.dpp = any(m.startswith(("quad_perm", "row_", "wave_")) for m in mods)
        self.wide_store = False
        self.sdata = []
        R = lambda i: parse_reg(ops[i]) if i < len(ops) else []
        if op.startswith("v_mfma"):
            self.kind = "mfma"
            self.passes = 8 if "32x32" in op else 4
            self.writes = R(0)
            self.reads = R(1) + R(2) + R(3)
            self.srcc = R(3)
        elif op.startswith("v_cmp"):
            self.kind = "valu"
            self.writes = R(0)
            self.reads = R(1) + R(2)
        elif op.startswith("v_permlane") and "swap" in op:
            self.kind = "valu"
            self.writes = R(0) + R(1)
            self.reads = R(0) + R(1)
        elif op.startswith("v_"):
            self.kind = "valu"
            self.writes = R(0)
            k = 1
            if op.startswith(("v_add_co", "v_sub_co", "v_addc_co", "v_subb_co", "v_div_scale")):
                self.writes += R(1)
                k = 2
            for i in range(k, len(ops)):
                self.reads += R(i)
            if op.startswith(("v_fmac", "v_pk_fmac", "v_dot2c", "v_writelane")) or "_d16" in op:
                self.reads += R(0)
            if self.dpp:
                self.reads += R(0)
        elif op.startswith("ds_read") or op.startswith("ds_bpermute") or op.startswith("ds_swizzle") or op.startswith("ds_permute"):
            self.kind = "ds"
            self.writes = R(0)
            for i in range(1, len(ops)):
                self.reads += R(i)
        elif op.startswith("ds_write"):
            self.kind = "ds"
            for i in range(len(ops)):
                self.reads += R(i)
        elif op.startswith("buffer_load"):
            self.kind = "vmem"
            if "lds" in mods:
                for i in range(len(ops)):
                    self.reads += R(i)
                self.reads.append(("m0", 0))
            else:
                self.writes = R(0)
                for i in range(1, len(ops)):
                    self.reads += R(i)
        elif op.startswith("buffer_store") or op.startswith("buffer_atomic"):
            self.kind = "vmem"
            for i in range(len(ops)):
                self.reads += R(i)
            self.sdata = R(0)
            self.wide_store = op.endswith("x4") or op.endswith("x3")
        elif op.startswith("global_load"):
            self.kind = "vmem"
            self.writes = R(0)
            for i in range(1, len(ops)):
                self.reads += R(i)
        elif op.startswith("global_store"):
            self.kind = "vmem"
            for i in range(len(ops)):
                self.reads += R(i)
            self.sdata = R(1)
            self.wide_store = op.endswith("x4") or op.endswith("x3")
        elif op == "s_nop":
            self.kind = "nop"
            self.states = int(ops[0], 0) + 1
        elif op.startswith(("s_load", "s_buffer_load", "s_memtime", "s_memrealtime")):
            self.kind = "smem"
            self.writes = R(0)
            for i in range(1, len(ops)):
                self.reads += R(i)
        elif op.startswith("s_"):
            self.kind = "salu"
            if op.startswith(("s_cmp", "s_cbranch", "s_branch", "s_waitcnt", "s_barrier", "s_endpgm", "s_setprio", "s_sleep", "s_bitcmp")):
                for i in range(len(ops)):
                    self.reads += R(i)
            else:
                self.writes = R(0)
                for i in range(1, len(ops)):
                    self.reads += R(i)
                if "saveexec" in op:
                    self.writes.append(("exec", 0))
        else:
            raise ValueError("unknown op " + text)


def need_states(p, c):
    n = 0
    pw = set(p.writes)
    cr = set(c.reads)
    cw = set(c.writes)
    pvw = {r for r in pw if r[0] in "va"}
    psw = {r for r in pw if r[0] in ("s", "vcc")}
    if p.kind == "valu":
        if c.kind == "mfma" and pvw & cr:
            n = max(n, 2)
        if c.kind == "mfma" and ("exec", 0) in pw:
            n = max(n, 4)
        if c.kind == "valu":
            if p.op.startswith(TRANS) and pvw & cr and not c.op.startswith(TRANS):
                n = max(n, 1)
            if p.op.startswith(TRANS) and pvw & cr:
                n = max(n, 1)
            if c.op.startswith("v_permlane") and pvw & cr:
                n = max(n, 2)
            if c.dpp and pvw & cr:
                n = max(n, 2)
            if c.op.startswith(("v_readlane", "v_readfirstlane")) and pvw & cr:
                n = max(n, 1)
            if psw & cr:
                n = max(n, 4 if c.op.startswith(("v_readlane", "v_writelane")) else 2)
        if c.kind == "vmem" and psw & cr:
            n = max(n, 5)
        if c.kind in ("salu", "smem") and psw & cr:
            n = max(n, 2)
    if p.kind == "mfma":
        big = 12 if p.passes == 8 else 8
        if c.kind == "mfma":
            ab = cr - set(c.srcc) if False else None
            cab = set(c.reads[: len(c.reads) - len(c.srcc)])
            if pvw & cab:
                n = max(n, big)
            if pvw & set(c.srcc):
                if set(c.srcc) == pvw and c.passes == p.passes:
                    pass
                else:
                    n = max(n, 10 if p.passes == 8 else 6)
            elif pvw & cw:
                n = max(n, big)
        elif c.kind in ("valu", "vmem", "ds"):
            if pvw & (cr | cw):
                n = max(n, big)
        if c.kind == "valu" and set(p.srcc) & cw:
            n = max(n, 7 if p.passes == 8 else 3)
    if p.kind == "vmem" and p.wide_store:
        if set(p.sdata) & cw:
            n = max(n, 2)
    if p.kind == "salu" and ("m0", 0) in pw and ("m0", 0) in cr and c.kind in ("vmem", "ds"):
        n = max(n, 1)
    return n


class Asm:
    def __init__(self):
        self.out = []
        self.win = []
        self.vm = 0
        self.lg = 0
        self.vm_done = 0
        self.lg_done = 0
        self.nops = 0
        self.ninst = 0

    def raw(self, text):
        self.out.append(text)

    def comment(self, t):
        self.out.append("    ; " + t)

    def label(self, name):
        self.out.append(name + ":")
        self.fence()

    def fence(self):
        if self.win:
            worst = 0
            dist = 0
            for p in reversed(self.win):
                need = 0
                if p.kind == "mfma":
                    need = 12 if p.passes == 8 else 8
                elif p.kind == "valu":
                    need = 5
                elif p.kind == "vmem" and p.wide_store:
                    need = 2
                elif p.kind == "salu":
                    need = 1
                worst = max(worst, need - dist)
                dist += p.states
            while worst > 0:
                k = min(worst, 16)
                self._push(Ins("s_nop %d" % (k - 1)))
                worst -= k
        self.win = []

    def slow_begin(self):
        st = (list(self.win), self.vm, self.lg, self.vm_done, self.lg_done)
        self.fence()
        return st

    def slow_end(self, st, label):
        self.fence()
        self.out.append(label + ":")
        self.win = st[0]
        self.vm, self.lg, self.vm_done, self.lg_done = st[1], st[2], st[3], st[4]

    def _push(self, ins):
        self.out.append("    " + ins.text)
        self.win.append(ins)
        if len(self.win) > 24:
            self.win.pop(0)
        self.ninst += 1

    def __call__(self, text):
        ins = Ins(text)
        dist = 0
        worst = 0
        for p in reversed(self.win):
            need = need_states(p, ins)
            worst = max(worst, need - dist)
            dist += p.states
        while worst > 0:
            k = min(worst, 16)
            self._push(Ins("s_nop %d" % (k - 1)))
            self.nops += 1
            worst -= k
        self._push(ins)
        tok = None
        if ins.kind == "vmem":
            tok = ("vm", self.vm)
            self.vm += 1
        elif ins.kind == "ds":
            tok = ("lg", self.lg)
            self.lg += 1
        return tok

    def wait(self, *toks):
        vmn = None
        lgn = None
        for t in toks:
            if t is None:
                continue
            if isinstance(t, list):
                self.wait(*t)
                continue
            kind, idx = t
            if kind == "vm" and idx >= self.vm_done:
                n = self.vm - 1 - idx
                vmn = n if vmn is None else min(vmn, n)
            if kind == "lg" and idx >= self.lg_done:
                n = self.lg - 1 - idx
                lgn = n if lgn is None else min(lgn, n)
        parts = []
        if vmn is not None:
            vmn = min(vmn, 63)
            parts.append("vmcnt(%d)" % vmn)
            self.vm_done = max(self.vm_done, self.vm - vmn)
        if lgn is not None:
            lgn = min(lgn, 15)
            parts.append("lgkmcnt(%d)" % lgn)
            self.lg_done = max(self.lg_done, self.lg - lgn)
        if parts:
            self("s_waitcnt " + " ".join(parts))

    def wait_all_vm(self):
        self("s_waitcnt vmcnt(0)")
        self.vm_done = self.vm

    def wait_all_lg(self):
        self("s_waitcnt lgkmcnt(0)")
        self.lg_done = self.lg

    def wait_all(self):
        self("s_waitcnt vmcnt(0) lgkmcnt(0)")
        self.vm_done = self.vm
        self.lg_done = self.lg

    def text(self):
        return "\n".join(self.out) + "\n"


def v(i, n=1):
    return "v%d" % i if n == 1 else "v[%d:%d]" % (i, i + n - 1)


def a(i, n=1):
    return "a%d" % i if n == 1 else "a[%d:%d]" % (i, i + n - 1)


def s(i, n=1):
    return "s%d" % i if n == 1 else "s[%d:%d]" % (i, i + n - 1)
```

```python
import sys, struct, math, os
sys.path.insert(0, "tools")
from emit import Asm, v, a, s

KB = 1024
TILE = 29 * KB
WQKV = 0
WO = WQKV + 16 * 3 * TILE
WGU = WO + 448 * KB
WD = WGU + 16 * 7 * TILE
XF = WD + 1568 * KB + 16 * KB
XF_SZ = 64 * 28 * KB
ST = XF + XF_SZ
ST_SZ = 2048 * 32
KV = ST + ST_SZ
KV_SZ = 256 * 16 * KB
OB = KV + 2 * KV_SZ
OB_SZ = 128 * 16 * KB
HB = OB + 2 * OB_SZ
HB_SZ = 64 * 112 * KB
FLAGS = HB + 2 * HB_SZ
DBG = FLAGS + 8 * KB
WS_BYTES = 268435456

LDS_TOTAL = 160 * KB
REGB = 3 * TILE
VST = 5 * TILE
FL = VST + 512
RED_PITCH = 464
RED_WAVE = 32 * RED_PITCH
DH = 28
STAMPS = None
ENV = os.environ.get


def f32bits(x):
    return struct.unpack("<I", struct.pack("<f", x))[0]


HEADER = """; Kernarg layout for this problem (80 bytes, ptrs only, base s[0:1]):
"""


def kernel_desc(name, vgpr, accum, sgpr=102):
    return f""".section .rodata,"a"
.p2align 6
.amdhsa_kernel {name}
  .amdhsa_next_free_vgpr {vgpr}
  .amdhsa_next_free_sgpr {sgpr}
  .amdhsa_accum_offset {accum}
  .amdhsa_group_segment_fixed_size 0
  .amdhsa_kernarg_size 80
  .amdhsa_user_sgpr_count 2
  .amdhsa_user_sgpr_kernarg_segment_ptr 1
  .amdhsa_system_sgpr_workgroup_id_x 1
.end_amdhsa_kernel
.text
"""


def kernel_head(A, name):
    A.raw(".text")
    A.raw(".globl %s" % name)
    A.raw(".p2align 8")
    A.raw(".type %s,@function" % name)
    A.raw("%s:" % name)


def srd(A, d, lo, hi, nbytes):
    A("s_mov_b32 %s, %s" % (s(d), s(lo)))
    A("s_mov_b32 %s, %s" % (s(d + 1), s(hi)))
    A("s_mov_b32 %s, 0x%x" % (s(d + 2), nbytes))
    A("s_mov_b32 %s, 0x00020000" % s(d + 3))


PREP_WGS = 296 + 128


def gen_prep(A):
    kernel_head(A, "prep_kernel")
    A("s_cmp_ge_u32 s2, %d" % PREP_WGS)
    A("s_cbranch_scc1 Lprep_end")
    A("s_load_dwordx16 s[16:31], s[0:1], 0")
    A("s_load_dwordx4 s[32:35], s[0:1], 64")
    A("v_lshlrev_b32 v10, 4, v0")
    A("v_lshrrev_b32 v2, 6, v0")
    A("v_and_b32 v0, 63, v0")
    A("v_readfirstlane_b32 s36, v2")
    A("v_lshlrev_b32 v1, 4, v0")
    A("v_and_b32 v3, 31, v0")
    A("v_lshrrev_b32 v4, 5, v0")
    A("v_and_b32 v5, 15, v0")
    A("v_lshrrev_b32 v6, 4, v0")
    A("s_waitcnt lgkmcnt(0)")
    srd(A, 4, 34, 35, WS_BYTES)
    A("s_cmp_ge_u32 s2, 296")
    A("s_cbranch_scc1 Lprep_fill")
    for i in range(28):
        A("v_mov_b32 %s, 0" % v(16 + i))
        A("v_mov_b32 %s, 0" % v(64 + i))
    A("s_cmp_lt_u32 s2, 48")
    A("s_cbranch_scc1 Lprep_qkv")
    A("s_cmp_lt_u32 s2, 160")
    A("s_cbranch_scc1 Lprep_gu")
    A("s_cmp_lt_u32 s2, 176")
    A("s_cbranch_scc1 Lprep_wo")
    A("s_cmp_lt_u32 s2, 232")
    A("s_cbranch_scc1 Lprep_wd")
    A("s_branch Lprep_x")

    A.label("Lprep_fill")
    A("s_sub_u32 s43, s2, 296")
    A("s_lshl_b32 s43, s43, 16")
    A("s_add_u32 s43, s43, %d" % KV)
    for i in range(4):
        A("v_mov_b32 %s, -1" % v(16 + i))
    for i in range(16):
        A("buffer_store_dwordx4 v[16:19], v10, s[4:7], s43 offen")
        A("s_add_u32 s43, s43, 4096")
    A("s_branch Lprep_end")

    def tile_loads(srdreg, pitch):
        A("s_mul_i32 s40, s36, %d" % (7 * 16 * pitch))
        for ss in range(7):
            for j in range(8):
                A("buffer_load_short_d16%s %s, v7, %s, s40 offen" % ("_hi" if j & 1 else "", v(16 + 4 * ss + j // 2 + (48 if j & 1 else 0)), s(srdreg, 4)))
                A("s_add_u32 s40, s40, %d" % (pitch if j < 7 else 9 * pitch))

    PERM = [8 * (j >> 2) + (j & 3) for j in range(8)]

    A.label("Lprep_qkv")
    srd(A, 8, 18, 19, 448 * 1344 * 2)
    A("s_mul_hi_u32 s37, s2, 0x55555556")
    A("s_mul_i32 s38, s37, 3")
    A("s_sub_u32 s38, s2, s38")
    A("s_mul_i32 s39, s38, 448")
    A("s_mul_i32 s41, s37, 28")
    A("s_add_u32 s39, s39, s41")
    A("v_add_u32 v7, s39, v3")
    A("v_lshlrev_b32 v7, 1, v7")
    A("v_mul_u32_u24 v8, %d, v4" % (8 * 2688))
    A("v_add_u32 v7, v7, v8")
    A("v_mov_b32 v8, 0x40000000")
    A("v_cmp_gt_u32 vcc, 28, v3")
    A("v_cndmask_b32 v7, v8, v7, vcc")
    tile_loads(8, 2688)
    A("s_mul_i32 s42, s2, %d" % TILE)
    A("s_add_u32 s42, s42, %d" % WQKV)
    A("s_branch Lprep_tile_fin")

    A.label("Lprep_gu")
    srd(A, 8, 24, 25, 448 * 1792 * 2)
    srd(A, 12, 26, 27, 448 * 1792 * 2)
    A("s_sub_u32 s43, s2, 48")
    A("s_lshl_b32 s39, s43, 4")
    A("v_add_u32 v7, s39, v5")
    A("v_lshlrev_b32 v7, 1, v7")
    A("v_mul_u32_u24 v8, %d, v4" % (8 * 3584))
    A("v_add_u32 v7, v7, v8")
    A("s_mov_b32 s44, 0x0000ffff")
    A("s_mov_b32 s45, 0x0000ffff")
    A("s_mov_b64 exec, s[44:45]")
    tile_loads(8, 3584)
    A("s_not_b64 exec, exec")
    tile_loads(12, 3584)
    A("s_mov_b64 exec, -1")
    A("s_mul_i32 s42, s43, %d" % TILE)
    A("s_add_u32 s42, s42, %d" % WGU)

    A.label("Lprep_tile_fin")
    A("s_mul_i32 s41, s36, %d" % (7 * KB))
    A("s_add_u32 s41, s41, s42")
    A.wait_all_vm()
    for i in range(28):
        A("v_or_b32 %s, %s, %s" % (v(16 + i), v(16 + i), v(64 + i)))
    for ss in range(7):
        if ss == 4:
            A("s_add_u32 s41, s41, 4096")
        A("buffer_store_dwordx4 %s, v1, s[4:7], s41 offen offset:%d" % (v(16 + 4 * ss, 4), (ss % 4) * KB))
    A("v_mov_b32 v10, 0")
    A("v_mov_b32 v11, 0")
    for i in range(28):
        A("v_lshlrev_b32 v8, 16, %s" % v(16 + i))
        A("v_and_b32 v9, 0xffff0000, %s" % v(16 + i))
        A("v_add_f32 v10, v10, v8")
        A("v_add_f32 v11, v11, v9")
    A("v_add_f32 v10, v10, v11")
    A("s_lshl_b32 s41, s36, 8")
    A("v_lshlrev_b32 v8, 2, v0")
    A("v_add_u32 v8, s41, v8")
    A("ds_write_b32 v8, v10")
    A.wait_all_lg()
    A("s_barrier")
    A("s_cmp_lg_u32 s36, 0")
    A("s_cbranch_scc1 Lprep_end")
    A("v_lshlrev_b32 v8, 2, v3")
    for q in range(8):
        A("ds_read_b32 %s, v8 offset:%d" % (v(44 + q), q * 128))
    A.wait_all_lg()
    for q in range(1, 8):
        A("v_add_f32 v44, v44, %s" % v(44 + q))
    A("v_cvt_pk_bf16_f32 v45, v44, v44")
    A("v_lshlrev_b32 v46, 16, v45")
    A("v_sub_f32 v47, v44, v46")
    A("v_cvt_pk_bf16_f32 v48, v47, v47")
    A("v_lshlrev_b32 v49, 16, v48")
    A("v_sub_f32 v50, v47, v49")
    A("v_cvt_pk_bf16_f32 v51, v50, v50")
    A("v_and_b32 v45, 0xffff, v45")
    A("v_or_b32 v52, v45, v49")
    A("v_and_b32 v53, 0xffff, v51")
    A("v_mov_b32 v54, 0")
    A("v_mov_b32 v55, 0")
    A("v_cmp_gt_u32 vcc, 32, v0")
    A("v_cndmask_b32 v52, v54, v52, vcc")
    A("v_cndmask_b32 v53, v54, v53, vcc")
    A("s_add_u32 s41, s42, %d" % (28 * KB))
    A("buffer_store_dwordx4 v[52:55], v1, s[4:7], s41 offen")
    A("s_branch Lprep_end")

    def lane_off16():
        A("v_lshrrev_b32 v7, 1, v6")
        A("v_lshlrev_b32 v7, 4, v7")
        A("v_and_b32 v8, 1, v6")
        A("v_lshlrev_b32 v8, 2, v8")
        A("v_add_u32 v7, v7, v8")
        A("v_mul_u32_u24 v7, 896, v7")
        A("v_lshlrev_b32 v8, 1, v5")
        A("v_add_u32 v7, v7, v8")

    def frag_loads(masked_hi):
        for j in range(8):
            A("s_add_u32 s41, s40, %d" % (PERM[j] * 896))
            if masked_hi and j == 4:
                A("s_mov_b32 s44, -1")
                A("s_mov_b32 s45, 0x0000ffff")
                A("s_mov_b64 exec, s[44:45]")
            for ft in range(7):
                A("buffer_load_short_d16%s %s, v7, s[8:11], s41 offen offset:%d" % ("_hi" if j & 1 else "", v(16 + 4 * ft + j // 2 + (48 if j & 1 else 0)), ft * 32))
        A("s_mov_b64 exec, -1")

    A.label("Lprep_wo")
    srd(A, 8, 20, 21, 448 * 448 * 2)
    lane_off16()
    A("s_sub_u32 s43, s2, 160")
    A("s_lshr_b32 s37, s43, 2")
    A("s_and_b32 s38, s43, 3")
    A("s_lshl_b32 s38, s38, 2")
    A("s_add_u32 s38, s38, s36")
    A("s_mul_i32 s40, s38, %d" % (28 * 896))
    A("s_mul_i32 s41, s37, 224")
    A("s_add_u32 s40, s40, s41")
    frag_loads(True)
    A("s_lshl_b32 s42, s43, 2")
    A("s_add_u32 s42, s42, s36")
    A("s_mul_i32 s42, s42, %d" % (7 * KB))
    A("s_add_u32 s42, s42, %d" % WO)
    A("s_branch Lprep_frag_fin")

    A.label("Lprep_wd")
    srd(A, 8, 28, 29, 1792 * 448 * 2)
    lane_off16()
    A("s_sub_u32 s43, s2, 176")
    A("s_mul_hi_u32 s37, s43, 0x12492493")
    A("s_mul_i32 s38, s37, 14")
    A("s_sub_u32 s38, s43, s38")
    A("s_mul_i32 s39, s36, 14")
    A("s_add_u32 s38, s38, s39")
    A("s_mul_i32 s40, s38, %d" % (32 * 896))
    A("s_mul_i32 s41, s37, 224")
    A("s_add_u32 s40, s40, s41")
    frag_loads(False)
    A("s_lshl_b32 s42, s43, 2")
    A("s_add_u32 s42, s42, s36")
    A("s_mul_i32 s42, s42, %d" % (7 * KB))
    A("s_add_u32 s42, s42, %d" % WD)

    A.label("Lprep_frag_fin")
    A.wait_all_vm()
    for i in range(28):
        A("v_or_b32 %s, %s, %s" % (v(16 + i), v(16 + i), v(64 + i)))
    for ft in range(7):
        if ft == 4:
            A("s_add_u32 s42, s42, 4096")
        A("buffer_store_dwordx4 %s, v1, s[4:7], s42 offen offset:%d" % (v(16 + 4 * ft, 4), (ft % 4) * KB))
    A("s_branch Lprep_end")

    A.label("Lprep_x")
    srd(A, 8, 16, 17, 2048 * 896)
    A("s_sub_u32 s43, s2, 232")
    A("v_mul_u32_u24 v7, 896, v3")
    A("v_lshlrev_b32 v8, 4, v4")
    A("v_add_u32 v7, v7, v8")
    A("s_mul_i32 s40, s43, %d" % (32 * 896))
    A("s_mul_i32 s41, s36, 224")
    A("s_add_u32 s40, s40, s41")
    for ss in range(7):
        A("buffer_load_dwordx4 %s, v7, s[8:11], s40 offen offset:%d" % (v(16 + 4 * ss, 4), ss * 32))
    A("v_and_b32 v8, 31, v0")
    A("v_lshlrev_b32 v8, 2, v8")
    A("s_lshl_b32 s41, s43, 7")
    A("s_add_u32 s41, s41, %d" % FLAGS)
    A("v_mov_b32 v9, 0")
    A("buffer_store_dword v9, v8, s[4:7], s41 offen")
    A("s_mul_i32 s42, s43, %d" % (28 * KB))
    A("s_mul_i32 s41, s36, %d" % (7 * KB))
    A("s_add_u32 s42, s42, s41")
    A("s_add_u32 s42, s42, %d" % XF)
    A.wait_all_vm()
    for ss in range(7):
        if ss == 4:
            A("s_add_u32 s42, s42, 4096")
        A("buffer_store_dwordx4 %s, v1, s[4:7], s42 offen offset:%d" % (v(16 + 4 * ss, 4), (ss % 4) * KB))
    A("v_mov_b32 v10, 0")
    A("v_mov_b32 v11, 0")
    for i in range(28):
        A("v_lshlrev_b32 v8, 16, %s" % v(16 + i))
        A("v_and_b32 v9, 0xffff0000, %s" % v(16 + i))
        A("v_add_f32 v10, v10, v8")
        A("v_fmac_f32 v11, v8, v8")
        A("v_add_f32 v10, v10, v9")
        A("v_fmac_f32 v11, v9, v9")
    A("v_mov_b32 v12, v10")
    A("v_mov_b32 v13, v11")
    A("v_permlane32_swap_b32 v10, v12")
    A("v_permlane32_swap_b32 v11, v13")
    A("v_add_f32 v10, v10, v12")
    A("v_add_f32 v11, v11, v13")
    A("v_lshlrev_b32 v8, 5, v3")
    A("s_lshl_b32 s41, s43, 10")
    A("s_lshl_b32 s40, s36, 3")
    A("s_add_u32 s41, s41, s40")
    A("s_add_u32 s41, s41, %d" % ST)
    A("buffer_store_dwordx2 v[10:11], v8, s[4:7], s41 offen")
    A.label("Lprep_end")
    A("s_endpgm")
    A.raw(kernel_desc("prep_kernel", 96, 96))


sWS, sX, sOUT, sDBG = 4, 8, 12, 36
sTEAM, sMEM, sWAVE, sTG, sFG = 16, 17, 18, 19, 20
sT0, sT1, sT2, sT3 = 21, 22, 23, 24
sCNT = 25
sGTG, sOTG, sMYFLAG, sHW = 26, 27, 28, 29
sC0, sC1 = 30, 31
sEX = 40
sHALF, sFLW, sFLP, sPURE = 42, 43, 44, 45
vLANE, vL16, vL16b, vL16c = 0, 1, 2, 3
vT = 4
vQ = 8
vRES = 108
vF = 116
vRED_R, vRED_W, vXST, vOUTO, vSTO, vFV, vFA, vOST = 120, 121, 122, 123, 124, 125, 126, 127
aPA, aPB = 124, 125
aAUG = 112

_lbl = [0]
MF32 = "v_mfma_f32_32x32x16_bf16"
MF16 = "v_mfma_f32_16x16x32_bf16"
EV = {"x": {}, "h": {}}


def newlbl(p):
    _lbl[0] += 1
    return "L%s%d" % (p, _lbl[0])


def hstamp(A, name):
    if STAMPS is not None and ENV("HST") == "1":
        _stamp(A, name)


def stamp(A, name):
    if STAMPS is not None and ENV("HST") != "1":
        _stamp(A, name)


def _stamp(A, name):
    i = len(STAMPS)
    assert i < 42
    STAMPS.append(name)
    A("s_memtime s[50:51]" if ENV("CYC") == "1" else "s_memrealtime s[50:51]")
    A.wait_all_lg()
    A("s_mov_b32 %s, s50" % s(60 + i))


def dump_stamps(A):
    if STAMPS is None:
        return
    A("s_lshl_b32 %s, s2, 2" % s(sT0))
    A("s_add_u32 %s, %s, %s" % (s(sT0), s(sT0), s(sHW)))
    A("s_lshl_b32 %s, %s, 8" % (s(sT0), s(sT0)))
    A("s_add_u32 %s, %s, %d" % (s(sT0), s(sT0), DBG))
    A("v_mov_b32 %s, 0" % v(vT + 1))
    A("s_mov_b64 exec, 1")
    for i in range(len(STAMPS)):
        A("v_mov_b32 %s, %s" % (v(vT), s(60 + i)))
        A("buffer_store_dword %s, %s, %s, %s offen offset:%d" % (v(vT), v(vT + 1), s(sWS, 4), s(sT0), i * 4))
        A("s_nop 1")
    A("s_mov_b64 exec, -1")


def ldsaddr(off):
    if off < 65536:
        return v(vL16), off
    if off < 131072:
        return v(vL16b), off - 65536
    return v(vL16c), off - 131072


class Prog:
    def __init__(self, A, role):
        self.A = A
        self.role = role
        self.n = 0
        self.ids = {}

    def post(self, name):
        A = self.A
        self.n += 1
        self.ids[name] = self.n
        A("v_mov_b32 %s, %d" % (v(vFV), self.n))
        A("ds_write_b32 %s, %s" % (v(vFA), v(vFV)))

    def _read(self, who, own):
        A = self.A
        if own:
            A("v_mov_b32 %s, %s" % (v(vF), s(sFLP)))
            return A("ds_read_b32 %s, %s" % (v(vF), v(vF)))
        A("v_mov_b32 %s, %d" % (v(vF), FL + (0 if who == "x" else 16)))
        return A("ds_read_b128 %s, %s" % (v(vF, 4), v(vF)))

    def _test(self, who, name, own):
        A = self.A
        ev = EV[who].get(name, 1)
        if not own:
            A("v_min3_u32 %s, %s, %s, %s" % (v(vF), v(vF), v(vF + 1), v(vF + 2)))
            A("v_min_u32 %s, %s, %s" % (v(vF), v(vF), v(vF + 3)))
        A("v_cmp_gt_u32 vcc, %d, %s" % (ev, v(vF)))
        A("s_nop 1")

    def check_begin(self, who, own=False):
        return self._read(who, own)

    def check_end(self, tok, who, name, own=False):
        A = self.A
        A.wait(tok)
        self._test(who, name, own)
        L = newlbl("c")
        A("s_cbranch_vccz %sd" % L)
        st = A.slow_begin()
        A("s_mov_b32 %s, 2000000" % s(sCNT))
        A.label(L)
        if self.role == "h" and not own:
            A("s_sleep 1")
        self._read(who, own)
        A.wait_all_lg()
        self._test(who, name, own)
        A("s_cbranch_vccz %sd" % L)
        A("s_sub_u32 %s, %s, 1" % (s(sCNT), s(sCNT)))
        A("s_cmp_lg_u32 %s, 0" % s(sCNT))
        A("s_cbranch_scc1 %s" % L)
        A.slow_end(st, L + "d")

    def wait(self, who, name, own=False):
        self.check_end(self.check_begin(who, own), who, name, own)


def poll(A, voff, val):
    L = newlbl("poll")
    A("s_mov_b32 %s, 200000" % s(sCNT))
    A.label(L)
    A("buffer_load_dword %s, %s, %s, 0 offen sc1" % (v(vT), v(voff), s(sWS, 4)))
    A.wait_all_vm()
    A("v_cmp_gt_u32 vcc, %d, %s" % (val, v(vT)))
    A("s_nop 1")
    A("s_cbranch_vccz %sd" % L)
    A("s_sub_u32 %s, %s, 1" % (s(sCNT), s(sCNT)))
    A("s_cmp_lg_u32 %s, 0" % s(sCNT))
    A("s_cbranch_scc1 %s" % L)
    A.label(L + "d")


def polla(A, areg, val):
    A("v_accvgpr_read_b32 %s, %s" % (v(vT + 3), a(areg)))
    poll(A, vT + 3, val)


def two_way(A, lines):
    L = newlbl("tw")
    A("s_cmp_lg_u32 %s, 0" % s(sPURE))
    A("s_cbranch_scc1 %sp" % L)
    win = list(A.win)
    vm0 = A.vm
    for ln in lines:
        A(ln + " sc1")
    A("s_branch %sd" % L)
    A.out.append(L + "p:")
    A.win = win
    A.vm = vm0
    toks = [A(ln) for ln in lines]
    A.out.append(L + "d:")
    return toks


def signal(A, val, toks=None):
    A("v_mov_b32 %s, %d" % (v(vT), val))
    A("v_mov_b32 %s, 0" % v(vT + 1))
    if toks is None:
        A.wait_all_vm()
    else:
        A.wait(*toks)
    A("s_mov_b64 exec, 1")
    two_way(A, ["buffer_store_dword %s, %s, %s, %s offen" % (v(vT), v(vT + 1), s(sWS, 4), s(sMYFLAG))])
    A("s_mov_b64 exec, -1")


def load_frags(A, dsts, sbase, sfx="", voff=None):
    toks = []
    for i, d in enumerate(dsts):
        toks.append(A("buffer_load_dwordx4 %s, %s, %s, %s offen offset:%d%s" % (d, voff or v(vL16), s(sWS, 4), s(sbase), (i % 4) * KB, sfx)))
        if i % 4 == 3 and i + 1 < len(dsts):
            A("s_add_u32 %s, %s, 4096" % (s(sbase), s(sbase)))
    return toks


def ln_stats_list(vs, va_, vsd, vaug):
    o = []
    o.append("v_add_f32 %s, %s, %s" % (v(vs), v(vs), v(vs + 2)))
    o.append("v_add_f32 %s, %s, %s" % (v(vs + 4), v(vs + 4), v(vs + 6)))
    o.append("v_add_f32 %s, %s, %s" % (v(vs + 1), v(vs + 1), v(vs + 3)))
    o.append("v_add_f32 %s, %s, %s" % (v(vs + 5), v(vs + 5), v(vs + 7)))
    o.append("v_add_f32 %s, %s, %s" % (v(vs), v(vs), v(vs + 4)))
    o.append("v_add_f32 %s, %s, %s" % (v(vs + 1), v(vs + 1), v(vs + 5)))
    o.append("v_mul_f32 %s, 0x%x, %s" % (v(vs), f32bits(1.0 / 448), v(vs)))
    o.append("v_mul_f32 %s, 0x%x, %s" % (v(vs + 1), f32bits(1.0 / 448), v(vs + 1)))
    o.append("v_fma_f32 %s, -%s, %s, %s" % (v(vs + 1), v(vs), v(vs), v(vs + 1)))
    o.append("v_max_f32 %s, 0, %s" % (v(vs + 1), v(vs + 1)))

    def rnd(d, x):
        o.append("v_cvt_pk_bf16_f32 %s, %s, %s" % (v(d), v(x), v(x)))
        o.append("v_lshlrev_b32 %s, 16, %s" % (v(d), v(d)))

    rnd(vs + 1, vs + 1)
    o.append("v_add_f32 %s, 0x%x, %s" % (v(vs + 1), f32bits(1e-5), v(vs + 1)))
    rnd(vs + 1, vs + 1)
    o.append("v_sqrt_f32 %s, %s" % (v(vs + 1), v(vs + 1)))
    o.append("v_sub_f32 %s, 0, %s" % (v(vs), v(vs)))
    rnd(vsd, vs + 1)
    o.append("v_rcp_f32 %s, %s" % (v(va_), v(vsd)))
    o.append("v_cvt_pk_bf16_f32 %s, %s, %s" % (v(vs + 2), v(vs), v(vs)))
    o.append("v_lshrrev_b32 %s, 5, %s" % (v(vs + 3), v(vLANE)))
    o.append("v_add_u32 %s, -1, %s" % (v(vs + 3), v(vs + 3)))
    o.append("v_and_b32 %s, %s, %s" % (v(vaug), v(vs + 2), v(vs + 3)))
    o.append("v_and_b32 %s, 0xffff, %s" % (v(vaug + 1), v(vaug)))
    o.append("v_accvgpr_write_b32 %s, %s" % (a(aAUG), v(vaug)))
    o.append("v_accvgpr_write_b32 %s, %s" % (a(aAUG + 1), v(vaug + 1)))
    o.append("v_accvgpr_write_b32 %s, 0" % a(aAUG + 2))
    o.append("v_accvgpr_write_b32 %s, 0" % a(aAUG + 3))
    return o


def load_x_and_stats(A, vs, sfx=" sc1"):
    A("s_mul_i32 %s, %s, %d" % (s(sT0), s(sGTG), 28 * KB))
    A("s_add_u32 %s, %s, %d" % (s(sT0), s(sT0), XF))
    A("s_lshl_b32 %s, %s, 10" % (s(sT2), s(sGTG)))
    A("s_add_u32 %s, %s, %d" % (s(sT2), s(sT2), ST))
    A("v_and_b32 %s, 31, %s" % (v(vT), v(vLANE)))
    A("v_lshlrev_b32 %s, 5, %s" % (v(vT), v(vT)))
    xt = load_frags(A, [a(4 * i, 4) for i in range(8)], sT0, sfx)
    A("s_add_u32 %s, %s, 4096" % (s(sT0), s(sT0)))
    st = [A("buffer_load_dwordx4 %s, %s, %s, %s offen%s" % (v(vs, 4), v(vT), s(sWS, 4), s(sT2), sfx)),
          A("buffer_load_dwordx4 %s, %s, %s, %s offen offset:16%s" % (v(vs + 4, 4), v(vT), s(sWS, 4), s(sT2), sfx))]
    xt += load_frags(A, [a(4 * i, 4) for i in range(8, 28)], sT0, sfx)
    return xt, st


class Fill:
    def __init__(self):
        self.q = []
        self.done = 0

    def add(self, items):
        self.q.extend(items)
        return self.done + len(self.q)

    def emit(self, A, slots):
        while self.q and slots > 0:
            it = self.q.pop(0)
            self.done += 1
            if callable(it):
                it(A)
                slots -= 1
            else:
                A(it)
                slots -= 2 if it.startswith(("v_exp", "v_rcp", "v_sqrt", "v_rsq")) else 1

    def until(self, A, mark):
        while self.done < mark:
            self.emit(A, 1)

    def flush(self, A):
        self.emit(A, 1 << 30)


class Op:
    __slots__ = ("lds", "emit", "pre", "before", "after", "slots")

    def __init__(self, lds, emit, slots=4):
        self.lds = lds
        self.emit = emit
        self.pre = []
        self.before = []
        self.after = []
        self.slots = slots


def mkring(base, n, extra=True):
    r = [v(base + 4 * i, 4) for i in range(n)]
    if extra:
        r += [a(116 + 4 * i, 4) for i in range(2)]
    return r


def run_stream(A, ops, ring, depth, fill, addr=None):
    rd = {}
    nring = len(ring)
    assert depth < nring

    def issue(i):
        for f in ops[i].pre:
            f()
        if addr is None:
            r, o = ldsaddr(ops[i].lds)
        else:
            r, o = addr(ops[i].lds)
        rd[i] = A("ds_read_b128 %s, %s offset:%d" % (ring[i % nring], r, o))

    for i in range(min(depth, len(ops))):
        issue(i)
    for i, op in enumerate(ops):
        for f in op.before:
            f()
        A.wait(rd[i])
        op.emit(ring[i % nring])
        if i + depth < len(ops):
            issue(i + depth)
        for f in op.after:
            f()
        if fill:
            fill.emit(A, op.slots)


def gate(P, ops, idx, depth, who, name, own=False, lead=8):
    box = {}
    b = idx - depth - lead
    if b < 0:
        ops[idx].pre.append(lambda: P.wait(who, name, own))
        return
    ops[b].after.append(lambda: box.__setitem__("t", P.check_begin(who, own)))
    ops[idx].pre.append(lambda: P.check_end(box["t"], who, name, own))


QSLOT = [(0, 1, 2), (2, 0, 1)]
GSLOT = {0: 0, 1: 1, 2: 2, 3: 3, 4: 4, 5: 0, 6: 1}
DSLOT = {j: (2 + j) % 5 for j in range(14)}
NX5 = 9
REG2 = 1 * TILE


def mf32(A, acc, first, swap, xop):
    def f(w):
        d = v(acc, 16)
        c = "0" if first else d
        if swap:
            A("%s %s, %s, %s, %s" % (MF32, d, xop, w, c))
        else:
            A("%s %s, %s, %s, %s" % (MF32, d, w, xop, c))
    return f


def phase1(P, L):
    A = P.A
    A.comment("================ P1 layer %d" % L)
    if L > 0:
        polla(A, aPA, 5 * L)
    stamp(A, "P1.polled")
    vS, vA_, vSD, vAUG = 96, 104, 105, 100
    accQ, accK, accV = 16, 32, 48
    RING, DEPTH = mkring(64, 4), 5
    VS = 80
    xt, stt = load_x_and_stats(A, vS, "" if L == 0 else " sc1")
    P.post("xl1_%d" % L)
    if L > 0:
        P.wait("x", "redfree5_%d" % (L - 1))
    fill = Fill()
    xop = lambda st_: a(4 * st_, 4)
    qs = QSLOT[L]
    ops = []
    for st_ in range(29):
        o1 = Op(qs[1] * TILE + st_ * KB, mf32(A, accK, st_ == 0, False, xop(st_)))
        if st_ < 28:
            o1.before.append(lambda st_=st_: A.wait(xt[st_]))
        ops.append(o1)
        ops.append(Op(qs[2] * TILE + st_ * KB, mf32(A, accV, st_ == 0, True, xop(st_))))
    nkv = len(ops)
    for st_ in range(29):
        ops.append(Op(qs[0] * TILE + st_ * KB, mf32(A, accQ, st_ == 0, False, xop(st_)), slots=5))
    gate(P, ops, 0, DEPTH, "h", "kv_w%d" % L)
    gate(P, ops, nkv, DEPTH, "h", "q_w%d" % L)
    avt = []
    marks = {}

    def stats_hook():
        A.wait(*stt)
        lst = ln_stats_list(vS, vA_, vSD, vAUG)
        lst += ["v_and_b32 %s, 31, %s" % (v(vT), v(vLANE)),
                "v_lshlrev_b32 %s, 2, %s" % (v(vT), v(vT)),
                "s_lshl_b32 %s, %s, 7" % (s(sT2), s(sWAVE)),
                "s_add_u32 %s, %s, %d" % (s(sT2), s(sT2), VST),
                "v_add_u32 %s, %s, %s" % (v(vT), s(sT2), v(vT)),
                "ds_write_b32 %s, %s" % (v(vT), v(vA_)),
                "v_lshrrev_b32 %s, 5, %s" % (v(vT + 1), v(vLANE)),
                "v_lshlrev_b32 %s, 4, %s" % (v(vT + 1), v(vT + 1)),
                "v_add_u32 %s, %s, %s" % (v(vT + 1), s(sT2), v(vT + 1))]
        for q in range(4):
            lst.append(lambda A, q=q: avt.append(A("ds_read_b128 %s, %s offset:%d" % (v(VS + 4 * q, 4), v(vT + 1), q * 32))))
        lst += ["s_lshl_b32 %s, %s, 4" % (s(sT0), s(sTEAM)),
                "s_add_u32 %s, %s, %s" % (s(sT0), s(sT0), s(sMEM)),
                "s_lshl_b32 %s, %s, 2" % (s(sT0), s(sT0)),
                "s_add_u32 %s, %s, %s" % (s(sT0), s(sT0), s(sWAVE)),
                "s_lshl_b32 %s, %s, 12" % (s(sT0), s(sT0)),
                "s_add_u32 %s, %s, %d" % (s(sT3), s(sT0), KV + L * KV_SZ),
                "s_lshl_b32 %s, %s, 12" % (s(sT1), s(sWAVE)),
                "v_add_u32 %s, %s, %s" % (v(vT + 2), s(sT1), v(vL16b)),
                "v_mov_b32 %s, -2" % v(vT + 3)]
        marks["st"] = fill.add(lst)

    ops[2 * 12].before.append(stats_hook)
    ops[2 * 27].before.append(lambda: fill.until(A, marks["st"]))
    vK, vV = 8, accK
    ep = []
    for r in range(16):
        ep.append("v_mul_f32 %s, %s, %s" % (v(accK + r), v(accK + r), v(vA_)))
    for i in range(8):
        ep.append("v_cvt_pk_bf16_f32 %s, %s, %s" % (v(vK + i), v(accK + 2 * i), v(accK + 2 * i + 1)))
    for i in range(8):
        ep.append("v_min_u32 %s, %s, %s" % (v(vK + i), v(vK + i), v(vT + 3)))
    for i in range(2):
        ep.append("buffer_store_dwordx4 %s, %s, %s, %s offen offset:%d sc1" % (v(vK + 4 * i, 4), v(vL16), s(sWS, 4), s(sT3), i * KB))
    ep.append(lambda A: A.wait(*avt))
    for r in range(16):
        ep.append("v_mul_f32 %s, %s, %s" % (v(accV + r), v(accV + r), v(VS + r)))
    for i in range(8):
        ep.append("v_cvt_pk_bf16_f32 %s, %s, %s" % (v(vV + i), v(accV + 2 * i), v(accV + 2 * i + 1)))
    for i in range(8):
        ep.append("v_min_u32 %s, %s, %s" % (v(vV + i), v(vV + i), v(vT + 3)))

    def ones(A):
        A("s_mov_b32 %s, 0x10000000" % s(sEX))
        A("s_mov_b32 %s, 0x10000000" % s(sEX + 1))
        A("s_mov_b64 exec, %s" % s(sEX, 2))
        for i in range(8):
            A("v_mov_b32 %s, 0x3f803f80" % v(vV + i))
        A("s_mov_b64 exec, -1")

    ep.append(ones)
    for i in range(2):
        ep.append("buffer_store_dwordx4 %s, %s, %s, %s offen offset:%d sc1" % (v(vV + 4 * i, 4), v(vL16), s(sWS, 4), s(sT3), (2 + i) * KB))
    for i in range(2):
        ep.append("ds_write_b128 %s, %s offset:%d" % (v(vT + 2), v(vK + 4 * i, 4), REGB - 65536 + 8 * 4096 + i * KB))
    for i in range(2):
        ep.append("ds_write_b128 %s, %s offset:%d" % (v(vT + 2), v(vV + 4 * i, 4), REGB - 65536 + 8 * 4096 + (2 + i) * KB))
    ops[nkv + 1].after.append(lambda: fill.add(ep))
    if STAMPS is not None:
        ops[nkv].before.append(lambda: stamp(A, "P1.kv"))
    run_stream(A, ops, RING, DEPTH, fill)
    fill.flush(A)
    P.post("qfree%d" % L)
    stamp(A, "P1.end")
    P.accQ, P.vA = accQ, vA_


def phase2(P, L):
    A = P.A
    A.comment("================ P2 layer %d" % L)
    accQ, vA_ = P.accQ, P.vA
    NB = 64
    SA, SB_, SC_, SD_ = 32, 48, 64, 80
    KBUF = 96
    accO = 16
    A("s_lshr_b32 %s, %s, 1" % (s(sT0), s(sWAVE)))
    A("s_add_u32 %s, %s, %s" % (s(sT0), s(sT0), s(sTEAM)))
    A("s_lshl_b32 %s, %s, 1" % (s(sT1), s(sWAVE)))
    A("s_and_b32 %s, %s, 3" % (s(sT1), s(sT1)))
    A("s_max_u32 %s, %s, 2" % (s(sT2), s(sT0)))
    A("s_sub_u32 %s, %s, 2" % (s(sT2), s(sT2)))
    A("s_lshl_b32 %s, %s, 4" % (s(sT2), s(sT2)))
    A("s_add_u32 %s, %s, %s" % (s(sT2), s(sT2), s(sMEM)))
    A("s_lshl_b32 %s, %s, 2" % (s(sT2), s(sT2)))
    A("s_add_u32 %s, %s, %s" % (s(sT2), s(sT2), s(sT1)))
    A("s_lshl_b32 %s, %s, 12" % (s(sT2), s(sT2)))
    A("s_add_u32 %s, %s, %d" % (s(sT2), s(sT2), KV + L * KV_SZ))
    A("s_add_u32 %s, %s, 4096" % (s(sT3), s(sT2)))
    Lf, Lj, Lr = newlbl("nofill"), newlbl("nbjoin"), newlbl("retry")

    def nb_loads():
        for i in range(8):
            A("buffer_load_dwordx4 %s, %s, %s, %s offen offset:%d sc1" % (v(NB + 4 * i, 4), v(vL16), s(sWS, 4), s(sT2 + i // 4), (i % 4) * KB))

    A("s_cmp_lt_u32 %s, 2" % s(sT0))
    Ls = newlbl("skip1")
    A("s_cbranch_scc1 %s" % Ls)
    nb_loads()
    A.label(Ls)
    A("s_lshl_b32 %s, %s, 2" % (s(sC1), s(sFG)))
    A("s_add_u32 %s, %s, %s" % (s(sC1), s(sC1), s(sWAVE)))
    A("s_mul_i32 %s, %s, %d" % (s(sC1), s(sC1), 28 * KB))
    A("s_add_u32 %s, %s, %d" % (s(sC1), s(sC1), WO))
    P.wo = load_frags(A, [a(4 * i, 4) for i in range(28)], sC1)
    for r in range(16):
        A("v_mul_f32 %s, %s, %s" % (v(accQ + r), v(accQ + r), v(vA_)))
    A("s_mov_b32 %s, 0" % s(sEX))
    A("s_mov_b32 %s, -1" % s(sEX + 1))
    A("s_mov_b64 exec, %s" % s(sEX, 2))
    A("v_mov_b32 %s, 1.0" % v(accQ + 12))
    A("s_mov_b64 exec, -1")
    A.wait_all_lg()
    if L == 0:
        A("v_and_b32 %s, 15, %s" % (v(vT + 3), v(vLANE)))
        A("v_lshlrev_b32 %s, 2, %s" % (v(vT + 3), v(vT + 3)))
        A("s_lshl_b32 %s, %s, 7" % (s(sC0), s(sTEAM)))
        A("s_add_u32 %s, %s, %d" % (s(sC0), s(sC0), FLAGS + 4096))
        A("v_add_u32 %s, %s, %s" % (v(vT + 3), s(sC0), v(vT + 3)))
        poll(A, vT + 3, 1)
        A("v_cmp_ne_u32 vcc, %s, %s" % (s(sPURE), v(vT)))
        A("s_nop 1")
        A("s_cmp_eq_u64 vcc, 0")
        A("s_cselect_b32 %s, 1, 0" % s(sPURE))
        if ENV("FORCE_IMPURE") == "1":
            A("s_mov_b32 %s, 0" % s(sPURE))
    vm_mark = A.vm
    A("s_cmp_ge_u32 %s, 2" % s(sT0))
    A("s_cbranch_scc1 %s" % Lf)
    A("s_waitcnt vmcnt(28)")
    for i in range(32):
        A("v_mov_b32 %s, 0" % v(NB + i))
    A("s_mov_b32 %s, 0" % s(sEX))
    A("s_mov_b32 %s, -1" % s(sEX + 1))
    A("s_mov_b64 exec, %s" % s(sEX, 2))
    A("v_mov_b32 %s, 0xce6e" % v(NB + 4 + 2))
    A("v_mov_b32 %s, 0xce6e" % v(NB + 16 + 4 + 2))
    A("s_mov_b64 exec, -1")
    A("s_branch %s" % Lj)
    A.label(Lf)
    A("s_mov_b32 %s, 200000" % s(sCNT))
    A("s_waitcnt vmcnt(28)")
    A.label(Lr)
    A("v_max3_u32 %s, %s, %s, %s" % (v(vT), v(NB), v(NB + 1), v(NB + 2)))
    A("v_max3_u32 %s, %s, %s, %s" % (v(vT + 1), v(NB + 3), v(NB + 4), v(NB + 5)))
    for i in range(6, 32, 4):
        A("v_max3_u32 %s, %s, %s, %s" % (v(vT), v(vT), v(NB + i), v(NB + i + 1)))
        if i + 3 < 32:
            A("v_max3_u32 %s, %s, %s, %s" % (v(vT + 1), v(vT + 1), v(NB + i + 2), v(NB + i + 3)))
    A("v_max_u32 %s, %s, %s" % (v(vT), v(vT), v(vT + 1)))
    A("v_cmp_eq_u32 vcc, -1, %s" % v(vT))
    A("s_nop 1")
    A("s_cbranch_vccz %s" % Lj)
    A("s_sub_u32 %s, %s, 1" % (s(sCNT), s(sCNT)))
    A("s_cmp_eq_u32 %s, 0" % s(sCNT))
    A("s_cbranch_scc1 %s" % Lj)
    nb_loads()
    A("s_waitcnt vmcnt(0)")
    A("s_branch %s" % Lr)
    A.label(Lj)
    A.vm = vm_mark
    A("s_lshl_b32 %s, %s, 13" % (s(sT1), s(sWAVE)))
    A("v_add_u32 %s, %s, %s" % (v(vT + 2), s(sT1), v(vL16b)))
    for i in range(8):
        A("ds_write_b128 %s, %s offset:%d" % (v(vT + 2), v(NB + 4 * i, 4), REGB - 65536 + i * KB))
    P.post("kv%d" % L)
    A("s_lshl_b32 %s, %s, 2" % (s(sT0), s(sFG)))
    A("s_add_u32 %s, %s, %s" % (s(sT0), s(sT0), s(sWAVE)))
    A("s_mul_i32 %s, %s, %d" % (s(sT0), s(sT0), 28 * KB))
    A("s_add_u32 %s, %s, %d" % (s(sT0), s(sT0), WO))
    for i in range(8):
        A("v_cvt_pk_bf16_f32 %s, %s, %s" % (v(vQ + i), v(accQ + 2 * i), v(accQ + 2 * i + 1)))
    A("v_and_b32 %s, 31, %s" % (v(vT), v(vLANE)))
    A("v_lshrrev_b32 %s, 5, %s" % (v(vT + 1), v(vLANE)))
    A("v_lshlrev_b32 %s, 2, %s" % (v(vT + 1), v(vT + 1)))
    A("v_sub_u32 %s, %s, %s" % (v(vT), v(vT), v(vT + 1)))
    A("v_mov_b32 %s, 0" % v(vT + 1))
    A("v_mov_b32 %s, 0x%x" % (v(vT + 3), f32bits(-1e9)))
    for r in range(0, 16, 2):
        A("v_cmp_gt_i32 vcc, %d, %s" % (8 * (r >> 2) + (r & 3), v(vT)))
        A("v_cmp_gt_i32 %s, %d, %s" % (s(sEX, 2), 8 * ((r + 1) >> 2) + ((r + 1) & 3), v(vT)))
        A("v_cndmask_b32 %s, %s, %s, vcc" % (v(SA + r), v(vT + 3), v(vT + 1)))
        A("v_cndmask_b32 %s, %s, %s, vcc" % (v(SB_ + r), v(vT + 1), v(vT + 3)))
        A("v_cndmask_b32 %s, %s, %s, %s" % (v(SA + r + 1), v(vT + 3), v(vT + 1), s(sEX, 2)))
        A("v_cndmask_b32 %s, %s, %s, %s" % (v(SB_ + r + 1), v(vT + 1), v(vT + 3), s(sEX, 2)))
    A("s_lshl_b32 %s, %s, 12" % (s(sT1), s(sWAVE)))
    A("v_add_u32 %s, %s, %s" % (v(vT + 2), s(sT1), v(vL16b)))
    P.wait("x", "kv%d" % L)
    stamp(A, "P2.nb")
    wof = Fill()
    base = REGB - 65536
    vM = 4
    order = [1, 2, 3, 4, 5, 6, 7, 0, 8]
    buf = {}
    for i, t in enumerate(order):
        buf[t] = SA if t == 0 else SB_ if t == 8 else (SC_ if i % 2 == 0 else SD_)
    fr = [(t, h) for t in order for h in range(2)]
    rd = {}
    NKB = 3

    def issue(i):
        t, h = fr[i]
        rd[i] = A("ds_read_b128 %s, %s offset:%d" % (v(KBUF + (i % NKB) * 4, 4), v(vT + 2), base + t * 4096 + h * KB))

    issue(0)
    issue(1)
    A("v_mov_b32 %s, 0x%x" % (v(vM), f32bits(-3e38)))
    A("v_mov_b32 %s, 0x%x" % (v(vM + 1), f32bits(-3e38)))
    fill = Fill()

    def maxlist(b):
        return ["v_max3_f32 %s, %s, %s, %s" % (v(vM + (k & 1)), v(vM + (k & 1)), v(b + 2 * k), v(b + 2 * k + 1)) for k in range(8)]

    pend = []
    for i, (t, h) in enumerate(fr):
        A.wait(rd[i])
        d = v(buf[t], 16)
        c = d if (h == 1 or t in (0, 8)) else "0"
        A("%s %s, %s, %s, %s" % (MF32, d, v(KBUF + (i % NKB) * 4, 4), v(vQ + 4 * h, 4), c))
        if i + 2 < len(fr):
            issue(i + 2)
        if h == 1:
            if pend:
                fill.add(maxlist(pend.pop(0)))
            pend.append(buf[t])
        fill.emit(A, 8 if h == 1 else 0)
        if h == 0:
            wof.emit(A, 2)
    fill.flush(A)
    for it in maxlist(pend.pop(0)):
        A(it)
    A("v_max_f32 %s, %s, %s" % (v(vM), v(vM), v(vM + 1)))
    A("v_mov_b32 %s, %s" % (v(vM + 1), v(vM)))
    A("v_permlane32_swap_b32 %s, %s" % (v(vM), v(vM + 1)))
    A("v_max_f32 %s, %s, %s" % (v(vM), v(vM), v(vM + 1)))
    cs = (DH ** -0.5) * math.log2(math.e)
    A("s_mov_b32 %s, 0x%x" % (s(sC0), f32bits(cs)))
    A("v_mul_f32 %s, %s, %s" % (v(vM), s(sC0), v(vM)))

    def softmax_list(b):
        o = []
        for r in range(16):
            o.append("v_fma_f32 %s, %s, %s, -%s" % (v(b + r), v(b + r), s(sC0), v(vM)))
            if r >= 1:
                o.append("v_exp_f32 %s, %s" % (v(b + r - 1), v(b + r - 1)))
        o.append("v_exp_f32 %s, %s" % (v(b + 15), v(b + 15)))
        for i in range(8):
            o.append("v_cvt_pk_bf16_f32 %s, %s, %s" % (v(b + i), v(b + 2 * i), v(b + 2 * i + 1)))
        return o

    proc = [(0, SA), (8, SB_), (7, SC_), (6, SD_)]
    free_after = [SA, SB_, SC_, SD_]
    rec = [1, 2, 3, 4, 5]
    for k, t in enumerate(rec):
        proc.append((t, free_after[k % 4]))
    stream = []
    for k, (t, b) in enumerate(proc):
        stream += [("v", t, 0), ("v", t, 1)]
        if k < len(rec):
            stream += [("k", rec[k], 0), ("k", rec[k], 1)]
    rd = {}

    def issue2(i):
        kind, t, h = stream[i]
        rd[i] = A("ds_read_b128 %s, %s offset:%d" % (v(KBUF + (i % NKB) * 4, 4), v(vT + 2), base + t * 4096 + (2048 if kind == "v" else 0) + h * KB))

    issue2(0)
    issue2(1)
    si = 0
    first = True
    mf = []
    for k, (t, b) in enumerate(proc):
        sm = softmax_list(b)
        step = max(1, len(sm) // (len(mf) + 1)) if mf else 0
        for j, it in enumerate(sm):
            A(it)
            if mf and (j + 1) % step == 0:
                mf.pop(0)(A)
            if j % 8 == 3:
                wof.emit(A, 1)
        while mf:
            mf.pop(0)(A)

        def mk(i, dst, bop, c):
            def f(A):
                A.wait(rd[i])
                A("%s %s, %s, %s, %s" % (MF32, dst, v(KBUF + (i % NKB) * 4, 4), bop, c))
                if i + 2 < len(stream):
                    issue2(i + 2)
            return f

        mf.append(mk(si, v(accO, 16), v(b, 4), "0" if first else v(accO, 16)))
        mf.append(mk(si + 1, v(accO, 16), v(b + 4, 4), v(accO, 16)))
        first = False
        si += 2
        if k < len(rec):
            mf.append(mk(si, v(b, 16), v(vQ, 4), "0"))
            mf.append(mk(si + 1, v(b, 16), v(vQ + 4, 4), v(b, 16)))
            si += 2
    while mf:
        mf.pop(0)(A)
    wof.flush(A)
    P.post("kvfree%d" % L)
    stamp(A, "P2.pv")
    A("s_lshl_b32 %s, %s, 5" % (s(sT0), s(sGTG)))
    A("s_add_u32 %s, %s, %s" % (s(sT0), s(sT0), s(sMEM)))
    A("s_lshl_b32 %s, %s, 10" % (s(sT0), s(sT0)))
    A("s_add_u32 %s, %s, %d" % (s(sT0), s(sT0), OB + L * OB_SZ))
    A("v_mov_b32 %s, %s" % (v(vM), v(accO + 12)))
    A("v_mov_b32 %s, %s" % (v(vM + 1), v(accO + 12)))
    A("v_permlane32_swap_b32 %s, %s" % (v(vM), v(vM + 1)))
    A("v_rcp_f32 %s, %s" % (v(vM + 1), v(vM + 1)))
    for r in range(16):
        A("v_mul_f32 %s, %s, %s" % (v(accO + r), v(accO + r), v(vM + 1)))
    for i in range(8):
        A("v_cvt_pk_bf16_f32 %s, %s, %s" % (v(accO + i), v(accO + 2 * i), v(accO + 2 * i + 1)))
    lines = ["buffer_store_dwordx4 %s, %s, %s, %s offen offset:%d" % (v(accO + 4 * c, 4), v(vOST), s(sWS, 4), s(sT0), c * 512) for c in range(2)]
    if ENV("PT_O", "1") == "1":
        two_way(A, lines)
    else:
        for ln in lines:
            A(ln + " sc1")
    signal(A, 5 * L + 2)
    stamp(A, "P2.sig")


def reduce_finish(P, L, tag, flagval, final, hpart=False):
    A = P.A
    P.post("red%s" % tag)
    R = 16
    HS = 96 - 0
    hs = [96 + i for i in range(12)] + [8 + i for i in range(4)]
    if hpart:
        P.wait("h", "hred%s" % tag)
        toks = []
        for w in range(4):
            for c in range(4):
                toks.append(A("ds_read_b128 %s, %s offset:%d" % (v(R + (w * 4 + c) * 4, 4), v(vT + 3), w * RED_WAVE + c * 16)))
        A.wait(toks[7])
        for i in range(16):
            A("v_add_f32 %s, %s, %s" % (v(R + i), v(R + i), v(R + 16 + i)))
        A.wait(toks[15])
        for i in range(16):
            A("v_add_f32 %s, %s, %s" % (v(R + 32 + i), v(R + 32 + i), v(R + 48 + i)))
        for i in range(16):
            A("v_add_f32 %s, %s, %s" % (v(hs[i]), v(R + i), v(R + 32 + i)))
    P.wait("x", "red%s" % tag)
    toks = []
    for w in range(4):
        for c in range(4):
            toks.append(A("ds_read_b128 %s, %s offset:%d" % (v(R + (w * 4 + c) * 4, 4), v(vRED_R), w * RED_WAVE + c * 16)))
    RS = 80
    for i in range(8):
        A("v_lshlrev_b32 %s, 16, %s" % (v(RS + 2 * i), v(vRES + i)))
        A("v_and_b32 %s, 0xffff0000, %s" % (v(RS + 2 * i + 1), v(vRES + i)))
    A.wait(toks[7])
    for i in range(16):
        A("v_add_f32 %s, %s, %s" % (v(R + i), v(R + i), v(R + 16 + i)))
    if hpart:
        for i in range(16):
            A("v_add_f32 %s, %s, %s" % (v(R + i), v(R + i), v(hs[i])))
    A.wait(toks[15])
    P.post("redfree%s" % tag)
    for i in range(16):
        A("v_add_f32 %s, %s, %s" % (v(R + 32 + i), v(R + 32 + i), v(R + 48 + i)))
    for i in range(16):
        A("v_add_f32 %s, %s, %s" % (v(R + i), v(R + i), v(R + 32 + i)))
    for i in range(8):
        A("v_cvt_pk_bf16_f32 %s, %s, %s" % (v(R + 16 + i), v(R + 2 * i), v(R + 2 * i + 1)))
    for i in range(8):
        A("v_lshlrev_b32 %s, 16, %s" % (v(R + 2 * i), v(R + 16 + i)))
        A("v_and_b32 %s, 0xffff0000, %s" % (v(R + 2 * i + 1), v(R + 16 + i)))
    for i in range(16):
        A("v_add_f32 %s, %s, %s" % (v(R + i), v(R + i), v(RS + i)))
    for i in range(8):
        A("v_cvt_pk_bf16_f32 %s, %s, %s" % (v(vRES + i), v(R + 2 * i), v(R + 2 * i + 1)))
    A("s_mov_b32 %s, 0x7f7f7f7f" % s(sEX))
    A("s_mov_b32 %s, 0x7f7f7f7f" % s(sEX + 1))
    if final:
        A("s_mov_b64 exec, %s" % s(sEX, 2))
        for c in range(2):
            A("buffer_store_dwordx4 %s, %s, %s, 0 offen offset:%d" % (v(vRES + 4 * c, 4), v(vOUTO), s(sOUT, 4), c * 16))
        A("s_mov_b64 exec, -1")
        return
    A("s_mov_b32 %s, %d" % (s(sT0), XF))
    for q in range(4):
        A("v_mov_b32 %s, 0" % v(R + 48 + q))
    A("s_mov_b64 exec, %s" % s(sEX, 2))
    two_way(A, ["buffer_store_dwordx4 %s, %s, %s, %s offen offset:%d" % (v(vRES + 4 * c, 4), v(vXST), s(sWS, 4), s(sT0), c * 512) for c in range(2)])
    for i in range(8):
        A("v_lshlrev_b32 %s, 16, %s" % (v(R), v(vRES + i)))
        A("v_and_b32 %s, 0xffff0000, %s" % (v(R + 1), v(vRES + i)))
        A("v_add_f32 %s, %s, %s" % (v(R + 48), v(R + 48), v(R)))
        A("v_fmac_f32 %s, %s, %s" % (v(R + 49), v(R), v(R)))
        A("v_add_f32 %s, %s, %s" % (v(R + 50), v(R + 50), v(R + 1)))
        A("v_fmac_f32 %s, %s, %s" % (v(R + 51), v(R + 1), v(R + 1)))
    A("s_mov_b64 exec, -1")
    A("v_add_f32 %s, %s, %s" % (v(R + 48), v(R + 48), v(R + 50)))
    A("v_add_f32 %s, %s, %s" % (v(R + 49), v(R + 49), v(R + 51)))
    src, dst = 48, 50
    for mod in ("quad_perm:[1,0,3,2]", "quad_perm:[2,3,0,1]", "row_half_mirror"):
        for q in range(2):
            A("v_add_f32_dpp %s, %s, %s %s row_mask:0xf bank_mask:0xf" % (v(R + dst + q), v(R + src + q), v(R + src + q), mod))
        src, dst = dst, src
    A("s_mov_b32 %s, 0x01010101" % s(sEX))
    A("s_mov_b32 %s, 0x01010101" % s(sEX + 1))
    A("s_mov_b32 %s, %d" % (s(sT0), ST))
    A("s_mov_b64 exec, %s" % s(sEX, 2))
    two_way(A, ["buffer_store_dwordx2 %s, %s, %s, %s offen" % (v(R + src, 2), v(vSTO), s(sWS, 4), s(sT0))])
    A("s_mov_b64 exec, -1")
    signal(A, flagval)


def red_write(A, acc, k):
    A("ds_write_b128 %s, %s offset:%d" % (v(vRED_W), v(acc + k * 4, 4), (k // 7) * 16 * RED_PITCH + (k % 7) * 64))


def phase3(P, L):
    A = P.A
    A.comment("================ P3 layer %d" % L)
    A("s_lshl_b32 %s, %s, 5" % (s(sT0), s(sOTG)))
    A("s_lshl_b32 %s, %s, 2" % (s(sT1), s(sWAVE)))
    A("s_add_u32 %s, %s, %s" % (s(sT0), s(sT0), s(sT1)))
    A("s_lshl_b32 %s, %s, 10" % (s(sT0), s(sT0)))
    A("s_add_u32 %s, %s, %d" % (s(sT0), s(sT0), OB + L * OB_SZ))
    A("s_add_u32 %s, %s, %d" % (s(sT1), s(sT0), 16 * KB))
    polla(A, aPB, 5 * L + 2)
    stamp(A, "P3.polled")
    XO, acc = 72, 16
    xt = {}
    for ks in range(4):
        for tt in range(2):
            xt[(tt, ks)] = A("buffer_load_dwordx4 %s, %s, %s, %s offen offset:%d" % (v(XO + (tt * 4 + ks) * 4, 4), v(vL16), s(sWS, 4), s(sT0 + tt), ks * KB))
    P.wait("x", "kvfree%d" % L)
    for ks in range(4):
        for tt in range(2):
            A.wait(xt[(tt, ks)])
            for ft in range(7):
                d = v(acc + (tt * 7 + ft) * 4, 4)
                A("%s %s, %s, %s, %s" % (MF16, d, a((ks * 7 + ft) * 4, 4), v(XO + (tt * 4 + ks) * 4, 4), "0" if ks == 0 else d))
                if ks == 3 and (tt * 7 + ft) >= 5:
                    red_write(A, acc, tt * 7 + ft - 5)
    for k in range(9, 14):
        red_write(A, acc, k)
    stamp(A, "P3.mfma")
    reduce_finish(P, L, "3_%d" % L, 5 * L + 3, False)
    stamp(A, "P3.sig")


def gelu_list(acc, vK0, vK1, vS2, tmp, out, store):
    o = []
    for r in range(8):
        o.append("v_mul_f32 %s, %s, %s" % (v(tmp + r), v(acc + r), v(acc + r)))
    for r in range(8):
        o.append("v_fma_f32 %s, %s, %s, %s" % (v(tmp + r), v(tmp + r), v(vK1), v(vK0)))
    for r in range(8):
        o.append("v_mul_f32 %s, %s, %s" % (v(tmp + r), v(tmp + r), v(acc + r)))
    for r in range(8):
        o.append("v_exp_f32 %s, %s" % (v(tmp + r), v(tmp + r)))
        o.append("v_mul_f32 %s, %s, %s" % (v(acc + r), v(acc + r), v(acc + 8 + r)))
    for r in range(8):
        o.append("v_fma_f32 %s, %s, %s, %s" % (v(tmp + r), v(tmp + r), v(vS2), v(vS2)))
    for r in range(8):
        o.append("v_rcp_f32 %s, %s" % (v(tmp + r), v(tmp + r)))
    for r in range(8):
        o.append("v_mul_f32 %s, %s, %s" % (v(tmp + r), v(acc + r), v(tmp + r)))
    for i in range(4):
        o.append("v_cvt_pk_bf16_f32 %s, %s, %s" % (v(out + i), v(tmp + 2 * i), v(tmp + 2 * i + 1)))
    o.append(store)
    return o


def phase4(P, L):
    A = P.A
    A.comment("================ P4 layer %d" % L)
    A("s_mul_i32 %s, %s, 112" % (s(sT3), s(sGTG)))
    A("s_mul_i32 %s, %s, 7" % (s(sT2), s(sMEM)))
    A("s_add_u32 %s, %s, %s" % (s(sT3), s(sT3), s(sT2)))
    A("s_lshl_b32 %s, %s, 10" % (s(sT3), s(sT3)))
    A("s_add_u32 %s, %s, %d" % (s(sT3), s(sT3), HB + L * HB_SZ))
    A("s_add_u32 %s, %s, 4096" % (s(sT1), s(sT3)))
    polla(A, aPA, 5 * L + 3)
    stamp(A, "P4.polled")
    vS, vA_, vSD, vAUG = 96, 104, 105, 100
    vK0, vK1, vS2 = 13, 14, 12
    accs = [16, 32, 48, 64]
    RING, DEPTH = mkring(80, 4), 5
    TMP, OUTS = 96, [104, 8]
    xt, stt = load_x_and_stats(A, vS)
    P.post("xl4_%d" % L)
    c0 = -2.0 * math.sqrt(2.0 / math.pi) * math.log2(math.e)
    fill = Fill()
    xop = lambda st_: a(4 * st_, 4)
    ops = []
    for st_ in range(29):
        for t in range(3):
            o1 = Op(GSLOT[t] * TILE + st_ * KB, mf32(A, accs[t], st_ == 0, False, xop(st_)))
            if st_ < 28 and t == 0:
                o1.before.append(lambda st_=st_: A.wait(xt[st_]))
            ops.append(o1)
    start = {0: 0}
    for t in range(3, 7):
        start[t] = len(ops)
        for st_ in range(29):
            ops.append(Op(GSLOT[t] * TILE + st_ * KB, mf32(A, accs[t % 4], st_ == 0, False, xop(st_)), slots=int(ENV("P4SLOTS", "5"))))
    gate(P, ops, 0, DEPTH, "h", "g2_%d" % L)
    for t in range(3, 7):
        gate(P, ops, start[t], DEPTH, "h", "g%d_%d" % (t, L))
        ops[start[t]].after.append(lambda t=t: P.post("gd%d_%d" % (t - 1, L)))
    marks = {}

    def stats_hook():
        A.wait(*stt)
        lst = ln_stats_list(vS, vA_, vSD, vAUG)
        lst += ["v_mul_f32 %s, 0x%x, %s" % (v(vK0), f32bits(c0), v(vA_)),
                "v_mul_f32 %s, %s, %s" % (v(vK1), v(vA_), v(vA_)),
                "v_mul_f32 %s, %s, %s" % (v(vK1), v(vK1), v(vK0)),
                "v_mul_f32 %s, 0x%x, %s" % (v(vK1), f32bits(0.044715), v(vK1)),
                "v_mul_f32 %s, %s, %s" % (v(vS2), v(vSD), v(vSD))]
        marks["st"] = fill.add(lst)

    ops[3 * 12].before.append(stats_hook)
    ops[3 * 27].before.append(lambda: fill.until(A, marks["st"]))

    def epi(t):
        out = OUTS[t % 2]
        ln = "buffer_store_dwordx4 %s, %s, %s, %s offen offset:%d" % (v(out, 4), v(vL16), s(sWS, 4), s(sT3 if t < 4 else sT1), (t % 4) * KB)
        if ENV("PT_H", "0") == "1":
            st_ = lambda A, ln=ln: two_way(A, [ln])
        else:
            st_ = ln + " sc1"
        return gelu_list(accs[t % 4], vK0, vK1, vS2, TMP, out, st_)

    def add_epi(t):
        marks[t] = fill.add(epi(t))

    ops[start[3] + 1].after.append(lambda: (add_epi(0), add_epi(1), add_epi(2)))
    for t in range(4, 7):
        ops[start[t]].before.append(lambda t=t: fill.until(A, marks[t - 4]))
        ops[start[t] + 1].after.append(lambda t=t: add_epi(t - 1))
    if STAMPS is not None:
        ops[start[3]].before.append(lambda: stamp(A, "P4.g012"))
    run_stream(A, ops, RING, DEPTH, fill)
    P.post("gd6_%d" % L)
    stamp(A, "P4.g6")
    fill.flush(A)
    fill.add(epi(6))
    fill.flush(A)
    signal(A, 5 * L + 4)
    stamp(A, "P4.sig")


def phase5(P, L):
    A = P.A
    A.comment("================ P5 layer %d" % L)
    acc = 16
    RING, DEPTH = mkring(72, 6, False), 5
    vHL, vDW = 96, 97
    A("v_and_b32 %s, 15, %s" % (v(vHL), v(vLANE)))
    A("v_lshlrev_b32 %s, 4, %s" % (v(vHL), v(vHL)))
    A("v_lshrrev_b32 %s, 4, %s" % (v(vT), v(vLANE)))
    A("v_lshl_add_u32 %s, %s, 9, %s" % (v(vHL), v(vT), v(vHL)))
    A("s_mul_i32 %s, %s, %d" % (s(sT2), s(sWAVE), 7 * KB))
    A("v_add_u32 %s, %s, %s" % (v(vDW), s(sT2), v(vL16)))
    A("v_add_u32 %s, %s, %s" % (v(vDW + 1), s(sT2), v(vL16b)))
    A("v_add_u32 %s, %s, %s" % (v(vDW + 2), s(sT2), v(vL16c)))
    A("s_mul_i32 %s, %s, 112" % (s(sT0), s(sOTG)))
    A("s_mul_i32 %s, %s, 28" % (s(sT1), s(sWAVE)))
    A("s_add_u32 %s, %s, %s" % (s(sT0), s(sT0), s(sT1)))
    A("s_lshl_b32 %s, %s, 10" % (s(sT0), s(sT0)))
    A("s_add_u32 %s, %s, %d" % (s(sT0), s(sT0), HB + L * HB_SZ))
    polla(A, aPB, 5 * L + 4)
    stamp(A, "P5.polled")
    A("s_setprio 0")
    xt = {}
    for ks in range(NX5):
        for tt in range(2):
            xt[(tt, ks)] = A("buffer_load_dwordx4 %s, %s, %s, %s offen offset:%d" % (a((ks * 2 + tt) * 4, 4), v(vHL), s(sWS, 4), s(sT0), (ks % 2) * 2048 + tt * 256))
        if ks % 2 == 1 and ks < NX5 - 1:
            A("s_add_u32 %s, %s, 4096" % (s(sT0), s(sT0)))
        if ks == 1:
            P.post("xl5_%d" % L)
    if ENV("DETAIL") == "H":
        stamp(A, "P5.issued")
        A.wait_all_vm()
        stamp(A, "P5.harr")

    def addr(off):
        if off < 65536:
            return v(vDW), off
        if off < 131072:
            return v(vDW + 1), off - 65536
        return v(vDW + 2), off - 131072

    ops = []
    for ks in range(NX5):
        for ft in range(7):
            def em(w, ks=ks, ft=ft):
                for tt in range(2):
                    d = v(acc + (tt * 7 + ft) * 4, 4)
                    A("%s %s, %s, %s, %s" % (MF16, d, w, a((ks * 2 + tt) * 4, 4), "0" if ks == 0 else d))
            op = Op(DSLOT[ks] * TILE + ft * KB, em)
            if ft == 0:
                op.before.append(lambda ks=ks: A.wait(xt[(0, ks)], xt[(1, ks)]))
                if ks > 0:
                    op.after.append(lambda ks=ks: P.post("dd%d_%d" % (ks - 1, L)))
            ops.append(op)
    gate(P, ops, 0, DEPTH, "h", "d4_%d" % L, own=True)
    for ks in range(5, NX5):
        gate(P, ops, ks * 7, DEPTH, "h", "d%d_%d" % (ks, L), own=True, lead=5)
    if STAMPS is not None and L == 1 and ENV("DETAIL") == "P5":
        for ks in (1, 2, 3, 4, 5, 6, 7, 8):
            ops[ks * 7].after.append(lambda ks=ks: stamp(A, "P5.k%d" % ks))
    run_stream(A, ops, RING, DEPTH, None, addr=addr)
    P.post("dd%d_%d" % (NX5 - 1, L))
    A("s_setprio 3")
    A("v_subrev_u32 %s, %d, %s" % (v(vT + 3), REGB - REG2, v(vRED_R)))
    P.wait("x", "dd7_%d" % L)
    for k in range(14):
        red_write(A, acc, k)
    stamp(A, "P5.mfma")
    reduce_finish(P, L, "5_%d" % L, 5 * L + 5, L == 1, hpart=True)
    stamp(A, "P5.sig")


def gen_helper(P):
    A = P.A
    T = {}
    A("v_add_u32 %s, 0x10000, %s" % (v(vL16b), v(vL16)))
    A("v_add_u32 %s, 0x20000, %s" % (v(vL16c), v(vL16)))
    A("s_mul_i32 %s, %s, %d" % (s(sT3), s(sHW), 7 * KB))
    A("v_lshlrev_b32 v123, 7, %s" % v(vLANE))
    A("s_lshl_b32 %s, %s, 2" % (s(sT0), s(sTEAM)))
    A("s_add_u32 %s, %s, %s" % (s(sGTG), s(sT0), s(sHW)))

    def dma(key, sidx, stride, gbase, n, slot):
        A("s_mul_i32 %s, %s, %d" % (s(sT0), s(sidx), stride))
        A("s_add_u32 %s, %s, %s" % (s(sT0), s(sT0), s(sT3)))
        A("s_add_u32 %s, %s, %d" % (s(sT0), s(sT0), gbase))
        A("s_add_u32 %s, %s, %d" % (s(sT1), s(sT3), slot * TILE))
        toks = []
        for i in range(n):
            if i % 4 == 0:
                A("s_mov_b32 m0, %s" % s(sT1))
            toks.append(A("buffer_load_dwordx4 %s, %s, %s offen offset:%d lds" % (v(vL16), s(sWS, 4), s(sT0), (i % 4) * KB)))
            if i % 4 == 3 and i + 1 < n:
                A("s_add_u32 %s, %s, 4096" % (s(sT0), s(sT0)))
                A("s_add_u32 %s, %s, 4096" % (s(sT1), s(sT1)))
        T[key] = toks

    q = lambda L, p: dma(("q", L, p), sMEM, 3 * TILE, WQKV + p * TILE, 8, QSLOT[L][p])
    g = lambda L, t: dma(("g", L, t), sMEM, 7 * TILE, WGU + t * TILE, 8, GSLOT[t])
    d = lambda L, j: dma(("d", L, j), sFG, 14 * 28 * KB, WD + j * 28 * KB, 7, DSLOT[j])

    HACC = 0

    def sreg(j, i):
        k = (j - NX5) * 7 + i
        return a(56 + 4 * k, 4) if k < 18 else v(8 + 4 * (k - 18), 4)

    hreg = lambda j, tt: v(76 + ((j - NX5) * 2 + tt) * 4, 4)

    def stage(j):
        A("s_mul_i32 %s, %s, %d" % (s(sT0), s(sFG), 14 * 28 * KB))
        A("s_add_u32 %s, %s, %s" % (s(sT0), s(sT0), s(sT3)))
        A("s_add_u32 %s, %s, %d" % (s(sT0), s(sT0), WD + j * 28 * KB))
        T[("s", j)] = load_frags(A, [sreg(j, i) for i in range(7)], sT0)

    A("v_and_b32 v120, 15, %s" % v(vLANE))
    A("v_lshlrev_b32 v120, 4, v120")
    A("v_lshrrev_b32 v121, 4, %s" % v(vLANE))
    A("v_lshl_add_u32 v120, v121, 9, v120")
    A("v_and_b32 v122, 15, %s" % v(vLANE))
    A("v_mul_u32_u24 v122, %d, v122" % RED_PITCH)
    A("v_lshl_add_u32 v122, v121, 4, v122")
    A("s_mul_i32 %s, %s, %d" % (s(sT0), s(sHW), RED_WAVE))
    A("s_add_u32 %s, %s, %d" % (s(sT0), s(sT0), REG2))
    A("v_add_u32 v121, %s, v122" % s(sT0))
    A("s_lshl_b32 %s, %s, 2" % (s(sT0), s(sTEAM)))
    A("s_add_u32 %s, %s, %s" % (s(sOTG), s(sT0), s(sTG)))

    def landed(name, *keys):
        A.wait(*[T[k] for k in keys])
        P.post(name)

    def warm(sidx, stride, gbase, nbytes, nshare_sel):
        nshare, ssel = nshare_sel
        part = nbytes // (nshare * 4)
        assert part <= 8192
        A("s_mul_i32 %s, %s, %d" % (s(sT0), s(sidx), stride))
        A("s_lshl_b32 %s, %s, 2" % (s(sT1), s(ssel)))
        A("s_add_u32 %s, %s, %s" % (s(sT1), s(sT1), s(sHW)))
        A("s_mul_i32 %s, %s, %d" % (s(sT1), s(sT1), part))
        A("s_add_u32 %s, %s, %s" % (s(sT0), s(sT0), s(sT1)))
        A("s_add_u32 %s, %s, %d" % (s(sT0), s(sT0), gbase))
        nl = (part + 127) // 128 + 1
        if nl < 64:
            A("s_mov_b64 exec, 0x%x" % ((1 << nl) - 1) if nl <= 31 else "s_mov_b64 exec, -1")
        A("buffer_load_dword v124, v123, %s, %s offen" % (s(sWS, 4), s(sT0)))
        A("s_mov_b64 exec, -1")

    A("s_lshl_b32 %s, %s, 2" % (s(sC0), s(sHALF)))
    A("s_add_u32 %s, %s, %s" % (s(sC0), s(sC0), s(sTG)))
    warm_wo = lambda: warm(sFG, 112 * KB, WO, 112 * KB, (8, sC0))
    warm_q = lambda: [warm(sMEM, 3 * TILE, WQKV + p * 2 * TILE, (2 * TILE if p == 0 else TILE), (2, sHALF)) for p in range(2)]
    warm_d58 = lambda: warm(sFG, 14 * 28 * KB, WD + 5 * 28 * KB, 4 * 28 * KB, (8, sC0))
    warm_g = lambda t0: warm(sMEM, 7 * TILE, WGU + t0 * TILE, 2 * TILE, (2, sHALF))

    def touch_o(L):
        A("s_lshl_b32 %s, %s, 5" % (s(sT0), s(sGTG)))
        A("s_add_u32 %s, %s, %s" % (s(sT0), s(sT0), s(sMEM)))
        A("s_lshl_b32 %s, %s, 10" % (s(sT0), s(sT0)))
        A("s_add_u32 %s, %s, %d" % (s(sT0), s(sT0), OB + L * OB_SZ))
        A("s_add_u32 %s, %s, %d" % (s(sT1), s(sT0), 16 * KB))
        A("s_mov_b64 exec, 0xff")
        A("buffer_load_dword v124, v123, %s, %s offen" % (s(sWS, 4), s(sT0)))
        A("buffer_load_dword v124, v123, %s, %s offen" % (s(sWS, 4), s(sT1)))
        A("s_mov_b64 exec, -1")

    def touch_h(L):
        A("s_mul_i32 %s, %s, 112" % (s(sT0), s(sGTG)))
        A("s_mul_i32 %s, %s, 7" % (s(sT1), s(sMEM)))
        A("s_add_u32 %s, %s, %s" % (s(sT0), s(sT0), s(sT1)))
        A("s_lshl_b32 %s, %s, 10" % (s(sT0), s(sT0)))
        A("s_add_u32 %s, %s, %d" % (s(sT0), s(sT0), HB + L * HB_SZ))
        A("s_mov_b32 %s, -1" % s(sEX))
        A("s_mov_b32 %s, 0x00ffffff" % s(sEX + 1))
        A("s_mov_b64 exec, %s" % s(sEX, 2))
        A("buffer_load_dword v124, v123, %s, %s offen" % (s(sWS, 4), s(sT0)))
        A("s_mov_b64 exec, -1")

    NS0 = int(ENV("NS0", "4"))
    for L in range(2):
        if L == 0:
            q(0, 1)
            q(0, 2)
            q(0, 0)
            P.wait("x", "xl1_0")
            A("s_lshl_b32 %s, %s, 7" % (s(sT0), s(sTEAM)))
            A("s_lshl_b32 %s, %s, 2" % (s(sT1), s(sMEM)))
            A("s_add_u32 %s, %s, %s" % (s(sT0), s(sT0), s(sT1)))
            A("s_add_u32 %s, %s, %d" % (s(sT0), s(sT0), FLAGS + 4096))
            A("v_mov_b32 v124, %s" % s(sPURE))
            A("v_mov_b32 v127, 0")
            Lx = newlbl("xcc")
            A("s_cmp_lg_u32 %s, 0" % s(sHW))
            A("s_cbranch_scc1 %s" % Lx)
            A("s_mov_b64 exec, 1")
            A("buffer_store_dword v124, v127, %s, %s offen sc1" % (s(sWS, 4), s(sT0)))
            A("s_mov_b64 exec, -1")
            A.label(Lx)
            warm_wo()
            if ENV("PT_O", "1") == "1":
                touch_o(0)
        landed("kv_w%d" % L, ("q", L, 1), ("q", L, 2))
        landed("q_w%d" % L, ("q", L, 0))
        hstamp(A, "q.landed")
        if L > 0:
            P.wait("x", "xl1_%d" % L)
            warm_wo()
            if ENV("PT_O", "1") == "1":
                touch_o(L)
        else:
            for j in range(NX5, NX5 + NS0):
                stage(j)
        P.wait("x", "kv%d" % L)
        for t in (0, 1, 2):
            g(L, t)
        landed("g2_%d" % L, ("g", L, 0), ("g", L, 1), ("g", L, 2))
        hstamp(A, "g012.landed")
        P.wait("x", "xl4_%d" % L)
        g(L, 3)
        g(L, 4)
        if ENV("WC_G", "1") == "1":
            warm_g(5)
        landed("g3_%d" % L, ("g", L, 3))
        landed("g4_%d" % L, ("g", L, 4))
        hstamp(A, "g34.landed")
        warm_d58()
        P.wait("x", "gd2_%d" % L)
        hstamp(A, "gd2")
        g(L, 5)
        g(L, 6)
        d(L, 0)
        landed("g5_%d" % L, ("g", L, 5))
        landed("g6_%d" % L, ("g", L, 6))
        hstamp(A, "g56.landed")
        if L == 0:
            for j in range(NX5 + NS0, 14):
                stage(j)
        for j in range(1, 5):
            P.wait("x", "gd%d_%d" % (j + 2, L))
            d(L, j)
        landed("d4_%d" % L, *[("d", L, j) for j in range(5)])
        hstamp(A, "d04.landed")
        A("s_mul_i32 %s, %s, 112" % (s(sT2), s(sOTG)))
        A("s_mul_i32 %s, %s, 28" % (s(sT1), s(sHW)))
        A("s_add_u32 %s, %s, %s" % (s(sT2), s(sT2), s(sT1)))
        A("s_lshl_b32 %s, %s, 10" % (s(sT2), s(sT2)))
        A("s_add_u32 %s, %s, %d" % (s(sT2), s(sT2), HB + L * HB_SZ + NX5 * 2048))
        P.wait("x", "xl5_%d" % L, own=True)
        hstamp(A, "xl5")
        ht = {}
        for j in range(NX5, 14):
            for tt in range(2):
                ht[(j, tt)] = A("buffer_load_dwordx4 %s, v120, %s, %s offen offset:%d" % (hreg(j, tt), s(sWS, 4), s(sT2), tt * 256))
            A("s_add_u32 %s, %s, 2048" % (s(sT2), s(sT2)))
        for k in range(NX5 - 5):
            P.wait("x", "dd%d_%d" % (k, L), own=True)
            d(L, 5 + k)
            if k >= 2:
                landed("d%d_%d" % (3 + k, L), ("d", L, 3 + k))
        A("s_setprio 3")
        for j in range(NX5, 14):
            k = j - NX5
            A.wait(ht[(j, 0)], ht[(j, 1)], *T[("s", j)])
            for ft in range(7):
                for tt in range(2):
                    dd = a(HACC + (tt * 7 + ft) * 4, 4)
                    A("%s %s, %s, %s, %s" % (MF16, dd, sreg(j, ft), hreg(j, tt), "0" if j == NX5 else dd))
            if L == 1:
                hstamp(A, "hs%d" % j)
            if k < 2:
                landed("d%d_%d" % (7 + k, L), ("d", L, 7 + k))
        A("s_setprio 0")
        if L == 0:
            warm_q()
        P.wait("x", "dd5_%d" % L)
        for k in range(14):
            A("ds_write_b128 v121, %s offset:%d" % (a(HACC + k * 4, 4), (k // 7) * 16 * RED_PITCH + (k % 7) * 64))
        P.post("hred5_%d" % L)
        hstamp(A, "hred")
        if L == 0:
            P.wait("x", "dd8_%d" % L)
            q(1, 1)
            P.wait("x", "redfree5_%d" % L)
            q(1, 2)
            q(1, 0)


def gen_main():
    A = Asm()
    kernel_head(A, "main_kernel")
    A("s_cmp_ge_u32 s2, 256")
    A("s_cbranch_scc1 Lmain_end")
    A("s_load_dwordx2 s[30:31], s[0:1], 0")
    A("s_load_dwordx2 s[32:33], s[0:1], 56")
    A("s_load_dwordx4 s[52:55], s[0:1], 64")
    A("v_lshrrev_b32 v4, 6, v0")
    A("v_and_b32 v0, 63, v0")
    A("v_readfirstlane_b32 %s, v4" % s(sWAVE))
    A("v_lshlrev_b32 %s, 4, v0" % v(vL16))
    A("s_and_b32 %s, s2, 7" % s(sTEAM))
    A("s_lshl_b32 %s, %s, 1" % (s(sTEAM), s(sTEAM)))
    A("s_lshr_b32 %s, s2, 7" % s(sHALF))
    A("s_add_u32 %s, %s, %s" % (s(sTEAM), s(sTEAM), s(sHALF)))
    A("s_lshr_b32 %s, s2, 3" % s(sMEM))
    A("s_and_b32 %s, %s, 15" % (s(sMEM), s(sMEM)))
    A("s_lshr_b32 %s, %s, 2" % (s(sTG), s(sMEM)))
    A("s_and_b32 %s, %s, 3" % (s(sFG), s(sMEM)))
    A("s_and_b32 %s, %s, 3" % (s(sHW), s(sWAVE)))
    A("s_lshl_b32 %s, %s, 2" % (s(sFLW), s(sWAVE)))
    A("s_xor_b32 %s, %s, 16" % (s(sFLP), s(sFLW)))
    A("s_add_u32 %s, %s, %d" % (s(sFLW), s(sFLW), FL))
    A("s_add_u32 %s, %s, %d" % (s(sFLP), s(sFLP), FL))
    A("v_mov_b32 %s, %s" % (v(vFA), s(sFLW)))
    A("v_mov_b32 v5, 0")
    A("ds_write_b32 %s, v5" % v(vFA))
    A("s_getreg_b32 %s, hwreg(HW_REG_XCC_ID)" % s(sPURE))
    A("s_and_b32 %s, %s, 15" % (s(sPURE), s(sPURE)))
    A("s_add_u32 %s, %s, 1" % (s(sPURE), s(sPURE)))
    A("s_waitcnt lgkmcnt(0)")
    A.lg_done = A.lg
    srd(A, sWS, 54, 55, WS_BYTES)
    srd(A, sX, 30, 31, 2048 * 896)
    srd(A, sOUT, 32, 33, 2048 * 896)
    srd(A, sDBG, 52, 53, 256)
    A("s_barrier")
    A("s_cmp_ge_u32 %s, 4" % s(sWAVE))
    A("s_cbranch_scc1 Lhelper")
    A("s_setprio 3")
    A("v_add_u32 %s, 0x10000, %s" % (v(vL16b), v(vL16)))
    A("v_add_u32 %s, 0x20000, %s" % (v(vL16c), v(vL16)))
    A("s_lshl_b32 %s, %s, 2" % (s(sT0), s(sTEAM)))
    A("s_add_u32 %s, %s, %s" % (s(sGTG), s(sT0), s(sWAVE)))
    A("s_add_u32 %s, %s, %s" % (s(sOTG), s(sT0), s(sTG)))
    A("s_lshl_b32 %s, %s, 8" % (s(sT0), s(sTEAM)))
    A("s_add_u32 %s, %s, %d" % (s(sT0), s(sT0), FLAGS))
    A("s_lshl_b32 %s, %s, 4" % (s(sT1), s(sMEM)))
    A("s_add_u32 %s, %s, %s" % (s(sMYFLAG), s(sT0), s(sT1)))
    A("s_lshl_b32 %s, %s, 2" % (s(sT2), s(sWAVE)))
    A("s_add_u32 %s, %s, %s" % (s(sMYFLAG), s(sMYFLAG), s(sT2)))
    A("s_lshl_b32 %s, %s, 2" % (s(sT3), s(sTG)))
    A("v_and_b32 v4, 15, v0")
    A("v_lshlrev_b32 v4, 2, v4")
    A("s_lshl_b32 %s, %s, 6" % (s(sT1), s(sWAVE)))
    A("s_add_u32 %s, %s, %s" % (s(sT1), s(sT0), s(sT1)))
    A("v_add_u32 v6, %s, v4" % s(sT1))
    A("v_accvgpr_write_b32 %s, v6" % a(aPA))
    A("v_and_b32 v4, 3, v0")
    A("v_lshlrev_b32 v5, 4, v4")
    A("s_add_u32 %s, %s, %s" % (s(sT1), s(sT1), s(sT3)))
    A("v_add_u32 v6, %s, v5" % s(sT1))
    A("v_accvgpr_write_b32 %s, v6" % a(aPB))
    A("v_and_b32 v4, 15, v0")
    A("v_mul_u32_u24 v4, %d, v4" % RED_PITCH)
    A("v_lshrrev_b32 v5, 4, v0")
    A("v_lshl_add_u32 v4, v5, 4, v4")
    A("s_mul_i32 %s, %s, %d" % (s(sT0), s(sWAVE), RED_WAVE))
    A("s_add_u32 %s, %s, %d" % (s(sT0), s(sT0), REGB))
    A("v_add_u32 %s, %s, v4" % (v(vRED_W), s(sT0)))
    A("v_lshrrev_b32 v4, 3, v0")
    A("s_lshl_b32 %s, %s, 3" % (s(sT0), s(sWAVE)))
    A("v_add_u32 v4, %s, v4" % s(sT0))
    A("v_and_b32 v5, 7, v0")
    A("v_min_u32 v5, 6, v5")
    A("v_mul_u32_u24 v6, %d, v4" % RED_PITCH)
    A("v_lshl_add_u32 v6, v5, 6, v6")
    A("v_add_u32 %s, %d, v6" % (v(vRED_R), REGB))
    A("s_mul_i32 %s, %s, %d" % (s(sT0), s(sOTG), 28 * KB))
    A("s_mul_i32 %s, %s, %d" % (s(sT1), s(sFG), 7 * KB))
    A("s_add_u32 %s, %s, %s" % (s(sT0), s(sT0), s(sT1)))
    A("v_lshlrev_b32 v6, 10, v5")
    A("v_lshl_add_u32 v6, v4, 4, v6")
    A("v_add_u32 %s, %s, v6" % (v(vXST), s(sT0)))
    A("s_lshl_b32 %s, %s, 5" % (s(sT0), s(sOTG)))
    A("v_add_u32 v6, %s, v4" % s(sT0))
    A("v_mul_u32_u24 v7, 896, v6")
    A("v_lshl_add_u32 v7, v5, 5, v7")
    A("s_mul_i32 %s, %s, 224" % (s(sT1), s(sFG)))
    A("v_add_u32 %s, %s, v7" % (v(vOUTO), s(sT1)))
    A("v_lshlrev_b32 v7, 5, v6")
    A("s_lshl_b32 %s, %s, 3" % (s(sT1), s(sFG)))
    A("v_add_u32 %s, %s, v7" % (v(vSTO), s(sT1)))
    A("v_and_b32 v4, 15, v0")
    A("v_lshlrev_b32 v4, 4, v4")
    A("v_lshrrev_b32 v5, 5, v0")
    A("v_lshl_add_u32 v4, v5, 8, v4")
    A("v_bfe_u32 v5, v0, 4, 1")
    A("v_lshl_add_u32 %s, v5, 14, v4" % v(vOST))
    stamp(A, "start")
    for c in range(2):
        A("buffer_load_dwordx4 %s, %s, %s, 0 offen offset:%d" % (v(vRES + 4 * c, 4), v(vOUTO), s(sX, 4), c * 16))
    PX = Prog(A, "x")
    for L in range(2):
        for ph in (phase1, phase2, phase3, phase4, phase5):
            ph(PX, L)
    if ENV("HST") != "1":
        dump_stamps(A)
    A("s_endpgm")
    nx = A.ninst
    B = Asm()
    B.label("Lhelper")
    PH = Prog(B, "h")
    hstamp(B, "start")
    gen_helper(PH)
    if ENV("HST") == "1":
        dump_stamps(B)
    B.label("Lmain_end")
    B("s_endpgm")
    EV["x"] = PX.ids
    EV["h"] = PH.ids
    sys.stderr.write("main: X %d instr (%d auto nops), helper %d, events %d/%d\n" % (nx, A.nops, B.ninst, PX.n, PH.n))
    return A.text() + B.text() + kernel_desc("main_kernel", 256, 128)


def generate():
    global STAMPS
    A = Asm()
    A.raw(HEADER.rstrip())
    A.raw("; @launch kernel=prep_kernel grid=(%d,1,1) block=(256,1,1) lds=1024" % PREP_WGS)
    A.raw("; @launch kernel=main_kernel grid=(256,1,1) block=(512,1,1) lds=%d" % LDS_TOTAL)
    A.raw('.amdgcn_target "amdgcn-amd-amdhsa--gfx950"')
    gen_prep(A)
    gen_main()
    if STAMPS is not None:
        STAMPS = []
    return A.text() + gen_main()


if __name__ == "__main__":
    out = sys.argv[1] if len(sys.argv) > 1 else "k4.s"
    if len(sys.argv) > 2 and sys.argv[2] == "stamps":
        STAMPS = []
    open(out, "w").write(generate())
    if STAMPS is not None:
        open(out + ".stamps", "w").write("\n".join(STAMPS))
    elif os.path.exists(out + ".stamps"):
        os.remove(out + ".stamps")
```

```python
import re

_REG = re.compile(r"^(-|\|)?(abs\()?([vas])(\d+|\[(\d+):(\d+)\])\)?\|?$")


def parse_reg(tok):
    tok = tok.strip()
    if tok in ("vcc", "exec", "m0", "scc", "vcc_lo", "vcc_hi", "exec_lo", "exec_hi"):
        base = tok.split("_")[0]
        return [(base, 0)]
    m = _REG.match(tok)
    if not m:
        return []
    f = m.group(3)
    if m.group(5) is not None:
        return [(f, i) for i in range(int(m.group(5)), int(m.group(6)) + 1)]
    return [(f, int(m.group(4)))]


TRANS = ("v_exp_f32", "v_log_f32", "v_rcp_f32", "v_rsq_f32", "v_sqrt_f32", "v_sin_f32", "v_cos_f32")


class Ins:
    __slots__ = ("text", "op", "kind", "reads", "writes", "passes", "srcc", "states", "dpp", "wide_store", "sdata")

    def __init__(self, text):
        self.text = text
        body = text.split(";")[0].strip()
        parts = body.split(None, 1)
        self.op = parts[0]
        rest = parts[1] if len(parts) > 1 else ""
        ops = []
        cur = ""
        depth = 0
        for ch in rest:
            if ch == "[":
                depth += 1
            if ch == "]":
                depth -= 1
            if ch == "," and depth == 0:
                ops.append(cur.strip())
                cur = ""
            else:
                cur += ch
        if cur.strip():
            ops.append(cur.strip())
        mods = []
        if ops:
            toks = ops[-1].split()
            ops[-1] = toks[0] if toks else ""
            mods = toks[1:]
        op = self.op
        self.reads = []
        self.writes = []
        self.passes = 0
        self.srcc = []
        self.states = 1
        self.dpp = any(m.startswith(("quad_perm", "row_", "wave_")) for m in mods)
        self.wide_store = False
        self.sdata = []
        R = lambda i: parse_reg(ops[i]) if i < len(ops) else []
        if op.startswith("v_mfma"):
            self.kind = "mfma"
            self.passes = 8 if "32x32" in op else 4
            self.writes = R(0)
            self.reads = R(1) + R(2) + R(3)
            self.srcc = R(3)
        elif op.startswith("v_cmp"):
            self.kind = "valu"
            self.writes = R(0)
            self.reads = R(1) + R(2)
        elif op.startswith("v_permlane") and "swap" in op:
            self.kind = "valu"
            self.writes = R(0) + R(1)
            self.reads = R(0) + R(1)
        elif op.startswith("v_"):
            self.kind = "valu"
            self.writes = R(0)
            k = 1
            if op.startswith(("v_add_co", "v_sub_co", "v_addc_co", "v_subb_co", "v_div_scale")):
                self.writes += R(1)
                k = 2
            for i in range(k, len(ops)):
                self.reads += R(i)
            if op.startswith(("v_fmac", "v_pk_fmac", "v_dot2c", "v_writelane")) or "_d16" in op:
                self.reads += R(0)
            if self.dpp:
                self.reads += R(0)
        elif op.startswith("ds_read") or op.startswith("ds_bpermute") or op.startswith("ds_swizzle") or op.startswith("ds_permute"):
            self.kind = "ds"
            self.writes = R(0)
            for i in range(1, len(ops)):
                self.reads += R(i)
        elif op.startswith("ds_write"):
            self.kind = "ds"
            for i in range(len(ops)):
                self.reads += R(i)
        elif op.startswith("buffer_load"):
            self.kind = "vmem"
            if "lds" in mods:
                for i in range(len(ops)):
                    self.reads += R(i)
                self.reads.append(("m0", 0))
            else:
                self.writes = R(0)
                for i in range(1, len(ops)):
                    self.reads += R(i)
        elif op.startswith("buffer_store") or op.startswith("buffer_atomic"):
            self.kind = "vmem"
            for i in range(len(ops)):
                self.reads += R(i)
            self.sdata = R(0)
            self.wide_store = op.endswith("x4") or op.endswith("x3")
        elif op.startswith("global_load_lds"):
            self.kind = "vmem"
            for i in range(len(ops)):
                self.reads += R(i)
            self.reads.append(("m0", 0))
        elif op.startswith("global_load"):
            self.kind = "vmem"
            self.writes = R(0)
            for i in range(1, len(ops)):
                self.reads += R(i)
        elif op.startswith("global_store"):
            self.kind = "vmem"
            for i in range(len(ops)):
                self.reads += R(i)
            self.sdata = R(1)
            self.wide_store = op.endswith("x4") or op.endswith("x3")
        elif op == "s_nop":
            self.kind = "nop"
            self.states = int(ops[0], 0) + 1
        elif op.startswith(("s_load", "s_buffer_load", "s_memtime", "s_memrealtime")):
            self.kind = "smem"
            self.writes = R(0)
            for i in range(1, len(ops)):
                self.reads += R(i)
        elif op.startswith("s_"):
            self.kind = "salu"
            if op.startswith(("s_cmp", "s_cbranch", "s_branch", "s_waitcnt", "s_barrier", "s_endpgm", "s_setprio", "s_sleep", "s_bitcmp")):
                for i in range(len(ops)):
                    self.reads += R(i)
            else:
                self.writes = R(0)
                for i in range(1, len(ops)):
                    self.reads += R(i)
                if "saveexec" in op:
                    self.writes.append(("exec", 0))
        else:
            raise ValueError("unknown op " + text)


def need_states(p, c):
    n = 0
    pw = set(p.writes)
    cr = set(c.reads)
    cw = set(c.writes)
    pvw = {r for r in pw if r[0] in "va"}
    psw = {r for r in pw if r[0] in ("s", "vcc")}
    if p.kind == "valu":
        if c.kind == "mfma" and pvw & cr:
            n = max(n, 2)
        if c.kind == "mfma" and ("exec", 0) in pw:
            n = max(n, 4)
        if c.kind == "valu":
            if p.op.startswith(TRANS) and pvw & cr and not c.op.startswith(TRANS):
                n = max(n, 1)
            if p.op.startswith(TRANS) and pvw & cr:
                n = max(n, 1)
            if c.op.startswith("v_permlane") and pvw & cr:
                n = max(n, 2)
            if c.dpp and pvw & cr:
                n = max(n, 2)
            if c.op.startswith(("v_readlane", "v_readfirstlane")) and pvw & cr:
                n = max(n, 1)
            if psw & cr:
                n = max(n, 4 if c.op.startswith(("v_readlane", "v_writelane")) else 2)
        if c.kind == "vmem" and psw & cr:
            n = max(n, 5)
        if c.kind in ("salu", "smem") and psw & cr:
            n = max(n, 2)
    if p.kind == "mfma":
        big = 12 if p.passes == 8 else 8
        if c.kind == "mfma":
            ab = cr - set(c.srcc) if False else None
            cab = set(c.reads[: len(c.reads) - len(c.srcc)])
            if pvw & cab:
                n = max(n, big)
            if pvw & set(c.srcc):
                if set(c.srcc) == pvw and c.passes == p.passes:
                    pass
                else:
                    n = max(n, 10 if p.passes == 8 else 6)
            elif pvw & cw:
                n = max(n, big)
        elif c.kind in ("valu", "vmem", "ds"):
            if pvw & (cr | cw):
                n = max(n, big)
        if c.kind == "valu" and set(p.srcc) & cw:
            n = max(n, 7 if p.passes == 8 else 3)
    if p.kind == "vmem" and p.wide_store:
        if set(p.sdata) & cw:
            n = max(n, 2)
    if p.kind == "salu" and ("m0", 0) in pw and ("m0", 0) in cr and c.kind in ("vmem", "ds"):
        n = max(n, 1)
    return n


class Asm:
    def __init__(self):
        self.out = []
        self.win = []
        self.vm = 0
        self.lg = 0
        self.vm_done = 0
        self.lg_done = 0
        self.nops = 0
        self.ninst = 0

    def raw(self, text):
        self.out.append(text)

    def comment(self, t):
        self.out.append("    ; " + t)

    def label(self, name):
        self.out.append(name + ":")
        self.fence()

    def fence(self):
        if self.win:
            worst = 0
            dist = 0
            for p in reversed(self.win):
                need = 0
                if p.kind == "mfma":
                    need = 12 if p.passes == 8 else 8
                elif p.kind == "valu":
                    need = 5
                elif p.kind == "vmem" and p.wide_store:
                    need = 2
                elif p.kind == "salu":
                    need = 1
                worst = max(worst, need - dist)
                dist += p.states
            while worst > 0:
                k = min(worst, 16)
                self._push(Ins("s_nop %d" % (k - 1)))
                worst -= k
        self.win = []

    def slow_begin(self):
        st = (list(self.win), self.vm, self.lg, self.vm_done, self.lg_done)
        self.fence()
        return st

    def slow_end(self, st, label):
        self.fence()
        self.out.append(label + ":")
        self.win = st[0]
        self.vm, self.lg, self.vm_done, self.lg_done = st[1], st[2], st[3], st[4]

    def _push(self, ins):
        self.out.append("    " + ins.text)
        self.win.append(ins)
        if len(self.win) > 24:
            self.win.pop(0)
        self.ninst += 1

    def __call__(self, text):
        ins = Ins(text)
        dist = 0
        worst = 0
        for p in reversed(self.win):
            need = need_states(p, ins)
            worst = max(worst, need - dist)
            dist += p.states
        while worst > 0:
            k = min(worst, 16)
            self._push(Ins("s_nop %d" % (k - 1)))
            self.nops += 1
            worst -= k
        self._push(ins)
        tok = None
        if ins.kind == "vmem":
            tok = ("vm", self.vm)
            self.vm += 1
        elif ins.kind == "ds":
            tok = ("lg", self.lg)
            self.lg += 1
        return tok

    def wait(self, *toks):
        vmn = None
        lgn = None
        for t in toks:
            if t is None:
                continue
            if isinstance(t, list):
                self.wait(*t)
                continue
            kind, idx = t
            if kind == "vm" and idx >= self.vm_done:
                n = self.vm - 1 - idx
                vmn = n if vmn is None else min(vmn, n)
            if kind == "lg" and idx >= self.lg_done:
                n = self.lg - 1 - idx
                lgn = n if lgn is None else min(lgn, n)
        parts = []
        if vmn is not None:
            vmn = min(vmn, 63)
            parts.append("vmcnt(%d)" % vmn)
            self.vm_done = max(self.vm_done, self.vm - vmn)
        if lgn is not None:
            lgn = min(lgn, 15)
            parts.append("lgkmcnt(%d)" % lgn)
            self.lg_done = max(self.lg_done, self.lg - lgn)
        if parts:
            self("s_waitcnt " + " ".join(parts))

    def wait_all_vm(self):
        self("s_waitcnt vmcnt(0)")
        self.vm_done = self.vm

    def wait_all_lg(self):
        self("s_waitcnt lgkmcnt(0)")
        self.lg_done = self.lg

    def wait_all(self):
        self("s_waitcnt vmcnt(0) lgkmcnt(0)")
        self.vm_done = self.vm
        self.lg_done = self.lg

    def text(self):
        return "\n".join(self.out) + "\n"


def v(i, n=1):
    return "v%d" % i if n == 1 else "v[%d:%d]" % (i, i + n - 1)


def a(i, n=1):
    return "a%d" % i if n == 1 else "a[%d:%d]" % (i, i + n - 1)


def s(i, n=1):
    return "s%d" % i if n == 1 else "s[%d:%d]" % (i, i + n - 1)
```

```python
import sys, struct, math, os
sys.path.insert(0, "tools")
from emit import Asm, v, a, s

KB = 1024
TILE = 29 * KB
WQKV = 0
WO = WQKV + 16 * 3 * TILE
WGU = WO + 448 * KB
WD = WGU + 16 * 7 * TILE
XF = WD + 1568 * KB + 16 * KB
XF_SZ = 64 * 28 * KB
ST = XF + XF_SZ
ST_SZ = 2048 * 32
KV = ST + ST_SZ
KV_SZ = 256 * 16 * KB
OB = KV + 2 * KV_SZ
OB_SZ = 128 * 16 * KB
HB = OB + 2 * OB_SZ
HB_SZ = 64 * 112 * KB
FLAGS = HB + 2 * HB_SZ
DBG = FLAGS + 8 * KB
WS_BYTES = 268435456

LDS_TOTAL = 160 * KB
REGB = 3 * TILE
VST = 5 * TILE
FL = VST + 512
RED_PITCH = 464
RED_WAVE = 32 * RED_PITCH
DH = 28
STAMPS = None
ENV = os.environ.get
NTSET = ENV("NT", "")
nt = lambda c: " nt" if c in NTSET else ""


def f32bits(x):
    return struct.unpack("<I", struct.pack("<f", x))[0]


HEADER = """; Kernarg layout for this problem (80 bytes, ptrs only, base s[0:1]):
"""


def kernel_desc(name, vgpr, accum, sgpr=102):
    return f""".section .rodata,"a"
.p2align 6
.amdhsa_kernel {name}
  .amdhsa_next_free_vgpr {vgpr}
  .amdhsa_next_free_sgpr {sgpr}
  .amdhsa_accum_offset {accum}
  .amdhsa_group_segment_fixed_size 0
  .amdhsa_kernarg_size 80
  .amdhsa_user_sgpr_count 2
  .amdhsa_user_sgpr_kernarg_segment_ptr 1
  .amdhsa_system_sgpr_workgroup_id_x 1
.end_amdhsa_kernel
.text
"""


def kernel_head(A, name):
    A.raw(".text")
    A.raw(".globl %s" % name)
    A.raw(".p2align 8")
    A.raw(".type %s,@function" % name)
    A.raw("%s:" % name)


def srd(A, d, lo, hi, nbytes):
    A("s_mov_b32 %s, %s" % (s(d), s(lo)))
    A("s_mov_b32 %s, %s" % (s(d + 1), s(hi)))
    A("s_mov_b32 %s, 0x%x" % (s(d + 2), nbytes))
    A("s_mov_b32 %s, 0x00020000" % s(d + 3))


PREP_WGS = 296 + 64


def gen_prep(A0):
    class W:
        def __call__(self, x):
            if x.startswith("buffer_store"):
                x += ENV("PS", " sc1")
            return A0(x)

        def __getattr__(self, n):
            return getattr(A0, n)
    A = W()
    kernel_head(A, "prep_kernel")
    A("s_cmp_ge_u32 s2, %d" % PREP_WGS)
    A("s_cbranch_scc1 Lprep_end")
    A("s_load_dwordx16 s[16:31], s[0:1], 0")
    A("s_load_dwordx4 s[32:35], s[0:1], 64")
    A("v_lshlrev_b32 v10, 4, v0")
    A("v_lshrrev_b32 v2, 6, v0")
    A("v_and_b32 v0, 63, v0")
    A("v_readfirstlane_b32 s36, v2")
    A("v_lshlrev_b32 v1, 4, v0")
    A("v_and_b32 v3, 31, v0")
    A("v_lshrrev_b32 v4, 5, v0")
    A("s_lshl_b32 s46, s36, 13")
    A("s_mul_i32 s47, s36, %d" % (7 * KB))
    A("s_waitcnt lgkmcnt(0)")
    srd(A, 4, 34, 35, WS_BYTES)
    A("s_cmp_lt_u32 s2, 112")
    A("s_cbranch_scc1 Lprep_gu")
    A("s_cmp_lt_u32 s2, 160")
    A("s_cbranch_scc1 Lprep_qkv")
    A("s_cmp_lt_u32 s2, 176")
    A("s_cbranch_scc1 Lprep_wo")
    A("s_cmp_lt_u32 s2, 232")
    A("s_cbranch_scc1 Lprep_wd")
    A("s_cmp_lt_u32 s2, 296")
    A("s_cbranch_scc1 Lprep_x")

    A("s_sub_u32 s43, s2, 296")
    if ENV("CODEWARM", "0") == "1":
        A("s_getpc_b64 s[48:49]")
        A.raw("Lpc1:")
        A("s_add_u32 s48, s48, main_kernel-Lpc1")
        A("s_addc_u32 s49, s49, 0")
        A("s_lshl_b32 s44, s43, 11")
        A("v_and_b32 v5, 15, v0")
        A("v_lshlrev_b32 v5, 7, v5")
        A("v_add_u32 v5, s44, v5")
        A("v_min_u32 v5, Lmain_end-main_kernel, v5")
        A("global_load_dword v6, v5, s[48:49]")
    if ENV("TLBW", "0") == "1":
        A("v_lshlrev_b32 v5, 14, v10")
        A("v_min_u32 v5, %d, v5" % FLAGS)
        A("buffer_load_dword v6, v5, s[4:7], 0 offen")
        srd(A, 8, 30, 31, 2048 * 896)
        A("v_min_u32 v5, %d, v5" % (2048 * 896 - 4))
        A("buffer_load_dword v7, v5, s[8:11], 0 offen")
    A("s_lshl_b32 s43, s43, 16")
    A("s_add_u32 s43, s43, %d" % KV)
    for i in range(4):
        A("v_mov_b32 %s, -1" % v(16 + i))
    for i in range(16):
        A("buffer_store_dwordx4 v[16:19], v10, s[4:7], s43 offen")
        A("s_add_u32 s43, s43, 4096")
    A("s_branch Lprep_end")

    A.label("Lprep_qkv")
    srd(A, 8, 18, 19, 448 * 1344 * 2)
    A("s_sub_u32 s43, s2, 112")
    A("s_and_b32 s37, s43, 7")
    A("s_lshr_b32 s38, s43, 3")
    A("s_lshl_b32 s37, s37, 1")
    A("s_and_b32 s39, s38, 1")
    A("s_add_u32 s37, s37, s39")
    A("s_lshr_b32 s38, s38, 1")
    A("s_mul_i32 s39, s38, 896")
    A("s_mul_i32 s41, s37, 56")
    A("s_add_u32 s39, s39, s41")
    A("v_lshrrev_b32 v5, 2, v0")
    A("v_mul_u32_u24 v5, 2688, v5")
    A("v_and_b32 v6, 3, v0")
    A("v_lshl_add_u32 v5, v6, 4, v5")
    A("s_mul_i32 s40, s36, %d" % (112 * 2688))
    A("s_add_u32 s40, s40, s39")
    A("s_mov_b32 s41, s46")
    for i in range(7):
        A("s_mov_b32 m0, s41")
        A("buffer_load_dwordx4 v5, s[8:11], s40 offen lds")
        A("s_add_u32 s40, s40, %d" % (16 * 2688))
        A("s_add_u32 s41, s41, 1024")
    A("s_mul_i32 s42, s37, 3")
    A("s_add_u32 s42, s42, s38")
    A("s_mul_i32 s42, s42, %d" % TILE)
    A("s_add_u32 s42, s42, %d" % WQKV)
    A("s_mov_b32 s45, 1")
    A("s_branch Lprep_T")

    A.label("Lprep_gu")
    A("s_and_b32 s37, s2, 7")
    A("s_mul_i32 s37, s37, 14")
    A("s_lshr_b32 s38, s2, 3")
    A("s_add_u32 s37, s37, s38")
    A("s_mul_i32 s42, s37, %d" % TILE)
    A("s_add_u32 s42, s42, %d" % WGU)
    A("s_lshl_b32 s37, s37, 5")
    A("s_mul_i32 s38, s36, %d" % (112 * 3584))
    A("s_add_u32 s37, s37, s38")
    A("v_lshrrev_b32 v7, 2, v0")
    A("v_mul_u32_u24 v7, 3584, v7")
    A("v_and_b32 v6, 1, v0")
    A("v_lshl_add_u32 v7, v6, 4, v7")
    A("v_add_u32 v7, s37, v7")
    A("v_and_b32 v6, 2, v0")
    A("v_cmp_eq_u32 vcc, 0, v6")
    A("v_mov_b32 v8, s26")
    A("v_mov_b32 v9, s27")
    A("v_mov_b32 v12, s24")
    A("v_mov_b32 v13, s25")
    A("v_cndmask_b32 v8, v8, v12, vcc")
    A("v_cndmask_b32 v9, v9, v13, vcc")
    A("v_add_co_u32 v8, vcc, v8, v7")
    A("v_addc_co_u32 v9, vcc, 0, v9, vcc")
    A("s_mov_b32 s48, %d" % (16 * 3584))
    A("s_mov_b32 s49, 0")
    A("s_mov_b32 s41, s46")
    for i in range(7):
        A("s_mov_b32 m0, s41")
        A("global_load_lds_dwordx4 v[8:9], off")
        A("v_lshl_add_u64 v[8:9], v[8:9], 0, s[48:49]")
        A("s_add_u32 s41, s41, 1024")
    A("s_mov_b32 s45, 2")

    A.label("Lprep_T")
    A("v_bfe_u32 v6, v0, 2, 2")
    A("v_lshl_add_u32 v5, v4, 3, v6")
    A("v_lshlrev_b32 v5, 6, v5")
    A("v_bfe_u32 v6, v0, 4, 1")
    A("v_lshl_add_u32 v5, v6, 5, v5")
    A("v_and_b32 v6, 3, v0")
    A("v_lshl_add_u32 v5, v6, 3, v5")
    A("v_add_u32 v5, s46, v5")
    A("s_add_u32 s41, s42, s47")
    A.wait_all_vm()
    for ss in range(7):
        for h in range(2):
            A("ds_read_b64_tr_b16 %s, v5 offset:%d" % (v(16 + 4 * ss + 2 * h, 2), ss * KB + h * 256))
    A.wait_all_lg()
    A("s_cmp_lg_u32 s45, 1")
    A("s_cbranch_scc1 Lprep_z1")
    A("s_mov_b32 s48, 0xf0000000")
    A("s_mov_b32 s49, 0xf0000000")
    A("s_mov_b64 exec, s[48:49]")
    for i in range(28):
        A("v_mov_b32 %s, 0" % v(16 + i))
    A("s_mov_b64 exec, -1")
    A.label("Lprep_z1")
    for ss in range(7):
        if ss == 4:
            A("s_add_u32 s41, s41, 4096")
        A("buffer_store_dwordx4 %s, v1, s[4:7], s41 offen offset:%d" % (v(16 + 4 * ss, 4), (ss % 4) * KB))
    A("v_mov_b32 v8, 0")
    A("v_mov_b32 v9, 0")
    A("v_mov_b32 v10, 0x3f803f80")
    for i in range(28):
        A("v_dot2c_f32_bf16 %s, %s, v10" % (v(8 + (i & 1)), v(16 + i)))
    A("s_nop 3")
    A("v_add_f32 v8, v8, v9")
    A("s_lshl_b32 s41, s36, 8")
    A("s_add_u32 s41, s41, 32768")
    A("v_lshlrev_b32 v6, 2, v0")
    A("v_add_u32 v6, s41, v6")
    A("ds_write_b32 v6, v8")
    A.wait_all_lg()
    A("s_barrier")
    A("s_cmp_lg_u32 s36, 0")
    A("s_cbranch_scc1 Lprep_end")
    A("v_lshlrev_b32 v8, 2, v3")
    for q in range(8):
        A("ds_read_b32 %s, v8 offset:%d" % (v(44 + q), 32768 + q * 128))
    A.wait_all_lg()
    for q in range(1, 8):
        A("v_add_f32 v44, v44, %s" % v(44 + q))
    A("v_cvt_pk_bf16_f32 v45, v44, v44")
    A("v_lshlrev_b32 v46, 16, v45")
    A("v_sub_f32 v47, v44, v46")
    A("v_cvt_pk_bf16_f32 v48, v47, v47")
    A("v_lshlrev_b32 v49, 16, v48")
    A("v_sub_f32 v50, v47, v49")
    A("v_cvt_pk_bf16_f32 v51, v50, v50")
    A("v_and_b32 v45, 0xffff, v45")
    A("v_or_b32 v52, v45, v49")
    A("v_and_b32 v53, 0xffff, v51")
    A("v_mov_b32 v54, 0")
    A("v_mov_b32 v55, 0")
    A("v_cmp_gt_u32 vcc, 32, v0")
    A("v_cndmask_b32 v52, v54, v52, vcc")
    A("v_cndmask_b32 v53, v54, v53, vcc")
    A("s_add_u32 s41, s42, %d" % (28 * KB))
    A("buffer_store_dwordx4 v[52:55], v1, s[4:7], s41 offen")
    A("s_branch Lprep_end")

    A.label("Lprep_wo")
    srd(A, 8, 20, 21, 448 * 448 * 2)
    A("s_sub_u32 s37, s2, 160")
    A("s_lshl_b32 s42, s37, 2")
    A("s_add_u32 s42, s42, s36")
    A("s_and_b32 s40, s42, 15")
    A("s_mul_i32 s40, s40, %d" % (28 * 896))
    A("s_lshr_b32 s37, s37, 2")
    A("s_mul_i32 s42, s42, %d" % (7 * KB))
    A("s_add_u32 s42, s42, %d" % WO)
    A("s_mov_b32 s45, 3")
    A("s_branch Lprep_F")

    A.label("Lprep_wd")
    srd(A, 8, 28, 29, 1792 * 448 * 2)
    A("s_sub_u32 s38, s2, 176")
    A("s_mul_hi_u32 s37, s38, 0x12492493")
    A("s_mul_i32 s40, s37, 14")
    A("s_sub_u32 s40, s38, s40")
    A("s_mul_i32 s42, s36, 14")
    A("s_add_u32 s40, s40, s42")
    A("s_mul_i32 s40, s40, %d" % (32 * 896))
    A("s_lshl_b32 s42, s38, 2")
    A("s_add_u32 s42, s42, s36")
    A("s_mul_i32 s42, s42, %d" % (7 * KB))
    A("s_add_u32 s42, s42, %d" % WD)
    A("s_mov_b32 s45, 4")

    A.label("Lprep_F")
    A("s_mul_i32 s37, s37, 224")
    A("s_add_u32 s40, s40, s37")
    A("v_lshrrev_b32 v7, 4, v0")
    A("v_mul_u32_u24 v7, 896, v7")
    A("v_and_b32 v6, 15, v0")
    A("v_lshl_add_u32 v7, v6, 4, v7")
    A("s_mov_b32 s41, s46")
    for i in range(8):
        A("s_mov_b32 m0, s41")
        A("buffer_load_dwordx4 v7, s[8:11], s40 offen lds")
        A("s_add_u32 s40, s40, %d" % (4 * 896))
        A("s_add_u32 s41, s41, 1024")
    A("v_lshlrev_b32 v5, 4, v4")
    A("v_bfe_u32 v6, v0, 4, 1")
    A("v_lshl_add_u32 v5, v6, 2, v5")
    A("v_bfe_u32 v6, v0, 2, 2")
    A("v_add_u32 v5, v5, v6")
    A("v_lshlrev_b32 v5, 8, v5")
    A("v_and_b32 v6, 3, v0")
    A("v_lshl_add_u32 v5, v6, 3, v5")
    A("v_add_u32 v5, s46, v5")
    A.wait_all_vm()
    for ft in range(7):
        for h in range(2):
            A("ds_read_b64_tr_b16 %s, v5 offset:%d" % (v(16 + 4 * ft + 2 * h, 2), h * 2048 + ft * 32))
    A.wait_all_lg()
    A("s_cmp_lg_u32 s45, 3")
    A("s_cbranch_scc1 Lprep_z2")
    A("s_mov_b32 s48, 0")
    A("s_mov_b32 s49, 0xffff0000")
    A("s_mov_b64 exec, s[48:49]")
    for ft in range(7):
        A("v_mov_b32 %s, 0" % v(16 + 4 * ft + 2))
        A("v_mov_b32 %s, 0" % v(16 + 4 * ft + 3))
    A("s_mov_b64 exec, -1")
    A.label("Lprep_z2")
    for ft in range(7):
        if ft == 4:
            A("s_add_u32 s42, s42, 4096")
        A("buffer_store_dwordx4 %s, v1, s[4:7], s42 offen offset:%d" % (v(16 + 4 * ft, 4), (ft % 4) * KB))
    A("s_branch Lprep_end")

    A.label("Lprep_x")
    srd(A, 8, 16, 17, 2048 * 896)
    A("s_sub_u32 s43, s2, 232")
    A("v_mul_u32_u24 v7, 896, v3")
    A("v_lshlrev_b32 v8, 4, v4")
    A("v_add_u32 v7, v7, v8")
    A("s_mul_i32 s40, s43, %d" % (32 * 896))
    A("s_mul_i32 s41, s36, 224")
    A("s_add_u32 s40, s40, s41")
    for ss in range(7):
        A("buffer_load_dwordx4 %s, v7, s[8:11], s40 offen offset:%d" % (v(16 + 4 * ss, 4), ss * 32))
    A("v_and_b32 v8, 31, v0")
    A("v_lshlrev_b32 v8, 2, v8")
    A("s_lshl_b32 s41, s43, 7")
    A("s_add_u32 s41, s41, %d" % FLAGS)
    A("v_mov_b32 v9, 0")
    A("buffer_store_dword v9, v8, s[4:7], s41 offen")
    A("s_mul_i32 s42, s43, %d" % (28 * KB))
    A("s_add_u32 s42, s42, s47")
    A("s_add_u32 s42, s42, %d" % XF)
    A.wait_all_vm()
    for ss in range(7):
        if ss == 4:
            A("s_add_u32 s42, s42, 4096")
        A("buffer_store_dwordx4 %s, v1, s[4:7], s42 offen offset:%d" % (v(16 + 4 * ss, 4), (ss % 4) * KB))
    A("v_mov_b32 v10, 0")
    A("v_mov_b32 v11, 0")
    A("v_mov_b32 v9, 0x3f803f80")
    for i in range(28):
        A("v_dot2c_f32_bf16 v10, %s, v9" % v(16 + i))
        A("v_dot2c_f32_bf16 v11, %s, %s" % (v(16 + i), v(16 + i)))
    A("s_nop 3")
    A("v_mov_b32 v12, v10")
    A("v_mov_b32 v13, v11")
    A("v_permlane32_swap_b32 v10, v12")
    A("v_permlane32_swap_b32 v11, v13")
    A("v_add_f32 v10, v10, v12")
    A("v_add_f32 v11, v11, v13")
    A("v_lshlrev_b32 v8, 5, v3")
    A("s_lshl_b32 s41, s43, 10")
    A("s_lshl_b32 s40, s36, 3")
    A("s_add_u32 s41, s41, s40")
    A("s_add_u32 s41, s41, %d" % ST)
    A("buffer_store_dwordx2 v[10:11], v8, s[4:7], s41 offen")
    A.label("Lprep_end")
    A("s_endpgm")
    A.raw(kernel_desc("prep_kernel", 64, 64))


sWS, sX, sOUT, sDBG = 4, 8, 12, 36
sTEAM, sMEM, sWAVE, sTG, sFG = 16, 17, 18, 19, 20
sT0, sT1, sT2, sT3 = 21, 22, 23, 24
sCNT = 25
sGTG, sOTG, sMYFLAG, sHW = 26, 27, 28, 29
sC0, sC1 = 30, 31
sEX = 40
sHALF, sFLW, sFLP, sPURE = 42, 43, 44, 45
vLANE, vL16, vL16b, vL16c = 0, 1, 2, 3
vT = 4
vQ = 8
vRES = 108
vF = 116
vRED_R, vRED_W, vXST, vOUTO, vSTO, vFV, vFA, vOST = 120, 121, 122, 123, 124, 125, 126, 127
aPA, aPB = 124, 125
aAUG = 112

_lbl = [0]
MF32 = "v_mfma_f32_32x32x16_bf16"
MF16 = "v_mfma_f32_16x16x32_bf16"
EV = {"x": {}, "h": {}}


def newlbl(p):
    _lbl[0] += 1
    return "L%s%d" % (p, _lbl[0])


def hstamp(A, name):
    if STAMPS is not None and ENV("HST") == "1":
        _stamp(A, name)


def stamp(A, name):
    if STAMPS is not None and ENV("HST") != "1":
        _stamp(A, name)


def _stamp(A, name):
    i = len(STAMPS)
    assert i < 42
    STAMPS.append(name)
    A("s_memtime s[50:51]" if ENV("CYC") == "1" else "s_memrealtime s[50:51]")
    A.wait_all_lg()
    A("s_mov_b32 %s, s50" % s(60 + i))


def dump_stamps(A):
    if STAMPS is None:
        return
    A("s_lshl_b32 %s, s2, 2" % s(sT0))
    A("s_add_u32 %s, %s, %s" % (s(sT0), s(sT0), s(sHW)))
    A("s_lshl_b32 %s, %s, 8" % (s(sT0), s(sT0)))
    A("s_add_u32 %s, %s, %d" % (s(sT0), s(sT0), DBG))
    A("v_mov_b32 %s, 0" % v(vT + 1))
    A("s_mov_b64 exec, 1")
    for i in range(len(STAMPS)):
        A("v_mov_b32 %s, %s" % (v(vT), s(60 + i)))
        A("buffer_store_dword %s, %s, %s, %s offen offset:%d" % (v(vT), v(vT + 1), s(sWS, 4), s(sT0), i * 4))
        A("s_nop 1")
    A("s_mov_b64 exec, -1")


def ldsaddr(off):
    if off < 65536:
        return v(vL16), off
    if off < 131072:
        return v(vL16b), off - 65536
    return v(vL16c), off - 131072


class Prog:
    def __init__(self, A, role):
        self.A = A
        self.role = role
        self.n = 0
        self.ids = {}

    def post(self, name):
        A = self.A
        self.n += 1
        self.ids[name] = self.n
        A("v_mov_b32 %s, %d" % (v(vFV), self.n))
        A("ds_write_b32 %s, %s" % (v(vFA), v(vFV)))

    def _read(self, who, own):
        A = self.A
        if own:
            A("v_mov_b32 %s, %s" % (v(vF), s(sFLP)))
            return A("ds_read_b32 %s, %s" % (v(vF), v(vF)))
        A("v_mov_b32 %s, %d" % (v(vF), FL + (0 if who == "x" else 16)))
        return A("ds_read_b128 %s, %s" % (v(vF, 4), v(vF)))

    def _test(self, who, name, own):
        A = self.A
        ev = EV[who].get(name, 1)
        if not own:
            A("v_min3_u32 %s, %s, %s, %s" % (v(vF), v(vF), v(vF + 1), v(vF + 2)))
            A("v_min_u32 %s, %s, %s" % (v(vF), v(vF), v(vF + 3)))
        A("v_cmp_gt_u32 vcc, %d, %s" % (ev, v(vF)))
        A("s_nop 1")

    def check_begin(self, who, own=False):
        return self._read(who, own)

    def check_end(self, tok, who, name, own=False):
        A = self.A
        A.wait(tok)
        self._test(who, name, own)
        L = newlbl("c")
        A("s_cbranch_vccz %sd" % L)
        st = A.slow_begin()
        A("s_mov_b32 %s, 2000000" % s(sCNT))
        A.label(L)
        A("s_sleep 1")
        self._read(who, own)
        A.wait_all_lg()
        self._test(who, name, own)
        A("s_cbranch_vccz %sd" % L)
        A("s_sub_u32 %s, %s, 1" % (s(sCNT), s(sCNT)))
        A("s_cmp_lg_u32 %s, 0" % s(sCNT))
        A("s_cbranch_scc1 %s" % L)
        A.slow_end(st, L + "d")

    def wait(self, who, name, own=False):
        self.check_end(self.check_begin(who, own), who, name, own)


def poll(A, voff, val):
    L = newlbl("poll")
    A("s_mov_b32 %s, 200000" % s(sCNT))
    A.label(L)
    A("buffer_load_dword %s, %s, %s, 0 offen sc1" % (v(vT), v(voff), s(sWS, 4)))
    A.wait_all_vm()
    A("v_cmp_gt_u32 vcc, %d, %s" % (val, v(vT)))
    A("s_nop 1")
    A("s_cbranch_vccz %sd" % L)
    A("s_sub_u32 %s, %s, 1" % (s(sCNT), s(sCNT)))
    A("s_cmp_lg_u32 %s, 0" % s(sCNT))
    A("s_cbranch_scc1 %s" % L)
    A.label(L + "d")


def polla(A, areg, val):
    A("v_accvgpr_read_b32 %s, %s" % (v(vT + 3), a(areg)))
    poll(A, vT + 3, val)


def two_way(A, lines):
    L = newlbl("tw")
    A("s_cmp_lg_u32 %s, 0" % s(sPURE))
    A("s_cbranch_scc1 %sp" % L)
    win = list(A.win)
    vm0 = A.vm
    for ln in lines:
        A(ln + " sc1")
    A("s_branch %sd" % L)
    A.out.append(L + "p:")
    A.win = win
    A.vm = vm0
    toks = [A(ln) for ln in lines]
    A.out.append(L + "d:")
    return toks


def signal(A, val, toks=None):
    A("v_mov_b32 %s, %d" % (v(vT), val))
    A("v_mov_b32 %s, 0" % v(vT + 1))
    if toks is None:
        A.wait_all_vm()
    else:
        A.wait(*toks)
    A("s_mov_b64 exec, 1")
    two_way(A, ["buffer_store_dword %s, %s, %s, %s offen" % (v(vT), v(vT + 1), s(sWS, 4), s(sMYFLAG))])
    A("s_mov_b64 exec, -1")


def load_frags(A, dsts, sbase, sfx="", voff=None):
    toks = []
    for i, d in enumerate(dsts):
        toks.append(A("buffer_load_dwordx4 %s, %s, %s, %s offen offset:%d%s" % (d, voff or v(vL16), s(sWS, 4), s(sbase), (i % 4) * KB, sfx)))
        if i % 4 == 3 and i + 1 < len(dsts):
            A("s_add_u32 %s, %s, 4096" % (s(sbase), s(sbase)))
    return toks


def ln_stats_list(vs, va_, vsd, vaug):
    o = []
    o.append("v_add_f32 %s, %s, %s" % (v(vs), v(vs), v(vs + 2)))
    o.append("v_add_f32 %s, %s, %s" % (v(vs + 4), v(vs + 4), v(vs + 6)))
    o.append("v_add_f32 %s, %s, %s" % (v(vs + 1), v(vs + 1), v(vs + 3)))
    o.append("v_add_f32 %s, %s, %s" % (v(vs + 5), v(vs + 5), v(vs + 7)))
    o.append("v_add_f32 %s, %s, %s" % (v(vs), v(vs), v(vs + 4)))
    o.append("v_add_f32 %s, %s, %s" % (v(vs + 1), v(vs + 1), v(vs + 5)))
    o.append("v_mul_f32 %s, 0x%x, %s" % (v(vs), f32bits(1.0 / 448), v(vs)))
    o.append("v_mul_f32 %s, 0x%x, %s" % (v(vs + 1), f32bits(1.0 / 448), v(vs + 1)))
    o.append("v_fma_f32 %s, -%s, %s, %s" % (v(vs + 1), v(vs), v(vs), v(vs + 1)))
    o.append("v_max_f32 %s, 0, %s" % (v(vs + 1), v(vs + 1)))

    def rnd(d, x):
        o.append("v_cvt_pk_bf16_f32 %s, %s, %s" % (v(d), v(x), v(x)))
        o.append("v_lshlrev_b32 %s, 16, %s" % (v(d), v(d)))

    rnd(vs + 1, vs + 1)
    o.append("v_add_f32 %s, 0x%x, %s" % (v(vs + 1), f32bits(1e-5), v(vs + 1)))
    rnd(vs + 1, vs + 1)
    o.append("v_sqrt_f32 %s, %s" % (v(vs + 1), v(vs + 1)))
    o.append("v_sub_f32 %s, 0, %s" % (v(vs), v(vs)))
    rnd(vsd, vs + 1)
    o.append("v_rcp_f32 %s, %s" % (v(va_), v(vsd)))
    o.append("v_cvt_pk_bf16_f32 %s, %s, %s" % (v(vs + 2), v(vs), v(vs)))
    o.append("v_lshrrev_b32 %s, 5, %s" % (v(vs + 3), v(vLANE)))
    o.append("v_add_u32 %s, -1, %s" % (v(vs + 3), v(vs + 3)))
    o.append("v_and_b32 %s, %s, %s" % (v(vaug), v(vs + 2), v(vs + 3)))
    o.append("v_and_b32 %s, 0xffff, %s" % (v(vaug + 1), v(vaug)))
    o.append("v_accvgpr_write_b32 %s, %s" % (a(aAUG), v(vaug)))
    o.append("v_accvgpr_write_b32 %s, %s" % (a(aAUG + 1), v(vaug + 1)))
    o.append("v_accvgpr_write_b32 %s, 0" % a(aAUG + 2))
    o.append("v_accvgpr_write_b32 %s, 0" % a(aAUG + 3))
    return o


def load_x_and_stats(A, vs, sfx=" sc1", nfirst=28):
    sB = 47
    A("s_mul_i32 %s, %s, %d" % (s(sB), s(sGTG), 28 * KB))
    A("s_add_u32 %s, %s, %d" % (s(sB), s(sB), XF))
    A("s_lshl_b32 %s, %s, 10" % (s(sT2), s(sGTG)))
    A("s_add_u32 %s, %s, %d" % (s(sT2), s(sT2), ST))
    A("v_and_b32 %s, 31, %s" % (v(vT), v(vLANE)))
    A("v_lshlrev_b32 %s, 5, %s" % (v(vT), v(vT)))
    xt = {}

    def one(i):
        xt[i] = A("buffer_load_dwordx4 %s, %s, %s, %s offen offset:%d%s" % (a(4 * i, 4), v(vL16), s(sWS, 4), s(sB), (i % 4) * KB, sfx))
        if i % 4 == 3 and i < 27:
            A("s_add_u32 %s, %s, 4096" % (s(sB), s(sB)))

    for i in range(min(6, nfirst)):
        one(i)
    st = [A("buffer_load_dwordx4 %s, %s, %s, %s offen%s" % (v(vs, 4), v(vT), s(sWS, 4), s(sT2), sfx)),
          A("buffer_load_dwordx4 %s, %s, %s, %s offen offset:16%s" % (v(vs + 4, 4), v(vT), s(sWS, 4), s(sT2), sfx))]
    for i in range(6, nfirst):
        one(i)
    rest = [(lambda i=i: one(i)) for i in range(nfirst, 28)]
    return xt, st, rest


class Fill:
    def __init__(self):
        self.q = []
        self.done = 0

    def add(self, items):
        self.q.extend(items)
        return self.done + len(self.q)

    def emit(self, A, slots):
        while self.q and slots > 0:
            it = self.q.pop(0)
            self.done += 1
            if callable(it):
                it(A)
                slots -= 1
            else:
                A(it)
                slots -= 2 if it.startswith(("v_exp", "v_rcp", "v_sqrt", "v_rsq")) else 1

    def until(self, A, mark):
        while self.done < mark:
            self.emit(A, 1)

    def flush(self, A):
        self.emit(A, 1 << 30)


class Op:
    __slots__ = ("lds", "emit", "pre", "before", "after", "slots")

    def __init__(self, lds, emit, slots=4):
        self.lds = lds
        self.emit = emit
        self.pre = []
        self.before = []
        self.after = []
        self.slots = slots


def mkring(base, n, extra=True):
    r = [v(base + 4 * i, 4) for i in range(n)]
    if extra:
        r += [a(116 + 4 * i, 4) for i in range(2)]
    return r


def run_stream(A, ops, ring, depth, fill, addr=None):
    rd = {}
    nring = len(ring)
    assert depth < nring

    def issue(i):
        for f in ops[i].pre:
            f()
        if addr is None:
            r, o = ldsaddr(ops[i].lds)
        else:
            r, o = addr(ops[i].lds)
        rd[i] = A("ds_read_b128 %s, %s offset:%d" % (ring[i % nring], r, o))

    for i in range(min(depth, len(ops))):
        issue(i)
    for i, op in enumerate(ops):
        for f in op.before:
            f()
        A.wait(rd[i])
        op.emit(ring[i % nring])
        if i + depth < len(ops):
            issue(i + depth)
        for f in op.after:
            f()
        if fill:
            fill.emit(A, op.slots)


def gate(P, ops, idx, depth, who, name, own=False, lead=8):
    box = {}
    b = idx - depth - lead
    if b < 0:
        ops[idx].pre.append(lambda: P.wait(who, name, own))
        return
    ops[b].after.append(lambda: box.__setitem__("t", P.check_begin(who, own)))
    ops[idx].pre.append(lambda: P.check_end(box["t"], who, name, own))


QSLOT = [(0, 1, 2), (2, 0, 1)]
GSLOT = {0: 0, 1: 1, 2: 2, 3: 3, 4: 4, 5: 0, 6: 1}
DSLOT = {j: (2 + j) % 5 for j in range(14)}
NX5 = 9
REG2 = 1 * TILE


def mf32(A, acc, first, swap, xop):
    def f(w):
        d = v(acc, 16)
        c = "0" if first else d
        if swap:
            A("%s %s, %s, %s, %s" % (MF32, d, xop, w, c))
        else:
            A("%s %s, %s, %s, %s" % (MF32, d, w, xop, c))
    return f


def phase1(P, L):
    A = P.A
    A.comment("================ P1 layer %d" % L)
    if L > 0:
        polla(A, aPA, 5 * L)
    stamp(A, "P1.polled")
    vS, vA_, vSD, vAUG = 96, 104, 105, 100
    accQ, accK, accV = 16, 32, 48
    RING, DEPTH = mkring(64, 4), 5
    VS = 80
    if L == 0:
        xt, stt, rest = P.early
    else:
        xt, stt, rest = load_x_and_stats(A, vS, " sc1", int(ENV("NF", "28")))
        if not rest:
            P.post("xl1_%d" % L)
    if L > 0:
        P.wait("x", "redfree5_%d" % (L - 1))
    fill = Fill()
    xop = lambda st_: a(4 * st_, 4)
    qs = QSLOT[L]
    ops = []
    for st_ in range(29):
        o1 = Op(qs[1] * TILE + st_ * KB, mf32(A, accK, st_ == 0, False, xop(st_)))
        if st_ < 28:
            o1.before.append(lambda st_=st_: A.wait(xt[st_]))
        ops.append(o1)
        ops.append(Op(qs[2] * TILE + st_ * KB, mf32(A, accV, st_ == 0, True, xop(st_))))
    nkv = len(ops)
    for st_ in range(29):
        ops.append(Op(qs[0] * TILE + st_ * KB, mf32(A, accQ, st_ == 0, False, xop(st_)), slots=5))
    for k, f in enumerate(rest):
        ops[k].after.append(f)
    if rest:
        ops[len(rest) - 1].after.append(lambda: P.post("xl1_%d" % L))
    if L == 0:
        for qq in range(3):
            gate(P, ops, 16 * qq, DEPTH, "h", "kvp%d" % qq, lead=3)
        gate(P, ops, 48, DEPTH, "h", "kv_w0", lead=3)
    else:
        gate(P, ops, 0, DEPTH, "h", "kv_w%d" % L)
    gate(P, ops, nkv, DEPTH, "h", "q_w%d" % L, lead=3 if L == 0 else 8)
    avt = []
    marks = {}

    def stats_hook():
        A.wait(*stt)
        lst = ln_stats_list(vS, vA_, vSD, vAUG)
        lst += ["v_and_b32 %s, 31, %s" % (v(vT), v(vLANE)),
                "v_lshlrev_b32 %s, 2, %s" % (v(vT), v(vT)),
                "s_lshl_b32 %s, %s, 7" % (s(sT2), s(sWAVE)),
                "s_add_u32 %s, %s, %d" % (s(sT2), s(sT2), VST),
                "v_add_u32 %s, %s, %s" % (v(vT), s(sT2), v(vT)),
                "ds_write_b32 %s, %s" % (v(vT), v(vA_)),
                "v_lshrrev_b32 %s, 5, %s" % (v(vT + 1), v(vLANE)),
                "v_lshlrev_b32 %s, 4, %s" % (v(vT + 1), v(vT + 1)),
                "v_add_u32 %s, %s, %s" % (v(vT + 1), s(sT2), v(vT + 1))]
        for q in range(4):
            lst.append(lambda A, q=q: avt.append(A("ds_read_b128 %s, %s offset:%d" % (v(VS + 4 * q, 4), v(vT + 1), q * 32))))
        lst += ["s_lshl_b32 %s, %s, 4" % (s(sT0), s(sTEAM)),
                "s_add_u32 %s, %s, %s" % (s(sT0), s(sT0), s(sMEM)),
                "s_lshl_b32 %s, %s, 2" % (s(sT0), s(sT0)),
                "s_add_u32 %s, %s, %s" % (s(sT0), s(sT0), s(sWAVE)),
                "s_lshl_b32 %s, %s, 12" % (s(sT0), s(sT0)),
                "s_add_u32 %s, %s, %d" % (s(sT3), s(sT0), KV + L * KV_SZ),
                "s_lshl_b32 %s, %s, 12" % (s(sT1), s(sWAVE)),
                "v_add_u32 %s, %s, %s" % (v(vT + 2), s(sT1), v(vL16b)),
                "v_mov_b32 %s, -2" % v(vT + 3)]
        marks["st"] = fill.add(lst)

    ops[2 * 12].before.append(stats_hook)
    ops[2 * 27].before.append(lambda: fill.until(A, marks["st"]))
    vK, vV = 8, accK
    ep = []
    for r in range(16):
        ep.append("v_mul_f32 %s, %s, %s" % (v(accK + r), v(accK + r), v(vA_)))
    for i in range(8):
        ep.append("v_cvt_pk_bf16_f32 %s, %s, %s" % (v(vK + i), v(accK + 2 * i), v(accK + 2 * i + 1)))
    for i in range(8):
        ep.append("v_min_u32 %s, %s, %s" % (v(vK + i), v(vK + i), v(vT + 3)))
    for i in range(2):
        ep.append("buffer_store_dwordx4 %s, %s, %s, %s offen offset:%d sc1" % (v(vK + 4 * i, 4), v(vL16), s(sWS, 4), s(sT3), i * KB))
    ep.append(lambda A: A.wait(*avt))
    for r in range(16):
        ep.append("v_mul_f32 %s, %s, %s" % (v(accV + r), v(accV + r), v(VS + r)))
    for i in range(8):
        ep.append("v_cvt_pk_bf16_f32 %s, %s, %s" % (v(vV + i), v(accV + 2 * i), v(accV + 2 * i + 1)))
    for i in range(8):
        ep.append("v_min_u32 %s, %s, %s" % (v(vV + i), v(vV + i), v(vT + 3)))

    def ones(A):
        A("s_mov_b32 %s, 0x10000000" % s(sEX))
        A("s_mov_b32 %s, 0x10000000" % s(sEX + 1))
        A("s_mov_b64 exec, %s" % s(sEX, 2))
        for i in range(8):
            A("v_mov_b32 %s, 0x3f803f80" % v(vV + i))
        A("s_mov_b64 exec, -1")

    ep.append(ones)
    for i in range(2):
        ep.append("buffer_store_dwordx4 %s, %s, %s, %s offen offset:%d sc1" % (v(vV + 4 * i, 4), v(vL16), s(sWS, 4), s(sT3), (2 + i) * KB))
    for i in range(2):
        ep.append("ds_write_b128 %s, %s offset:%d" % (v(vT + 2), v(vK + 4 * i, 4), REGB - 65536 + 8 * 4096 + i * KB))
    for i in range(2):
        ep.append("ds_write_b128 %s, %s offset:%d" % (v(vT + 2), v(vV + 4 * i, 4), REGB - 65536 + 8 * 4096 + (2 + i) * KB))
    ops[nkv + 1].after.append(lambda: fill.add(ep))
    if STAMPS is not None:
        ops[nkv].before.append(lambda: stamp(A, "P1.kv"))
    run_stream(A, ops, RING, DEPTH, fill)
    fill.flush(A)
    P.post("qfree%d" % L)
    stamp(A, "P1.end")
    P.accQ, P.vA = accQ, vA_


def phase2(P, L):
    A = P.A
    A.comment("================ P2 layer %d" % L)
    accQ, vA_ = P.accQ, P.vA
    NB = 64
    SA, SB_, SC_, SD_ = 32, 48, 64, 80
    KBUF = 96
    accO = 16
    A("s_lshr_b32 %s, %s, 1" % (s(sT0), s(sWAVE)))
    A("s_add_u32 %s, %s, %s" % (s(sT0), s(sT0), s(sTEAM)))
    A("s_lshl_b32 %s, %s, 1" % (s(sT1), s(sWAVE)))
    A("s_and_b32 %s, %s, 3" % (s(sT1), s(sT1)))
    A("s_max_u32 %s, %s, 2" % (s(sT2), s(sT0)))
    A("s_sub_u32 %s, %s, 2" % (s(sT2), s(sT2)))
    A("s_lshl_b32 %s, %s, 4" % (s(sT2), s(sT2)))
    A("s_add_u32 %s, %s, %s" % (s(sT2), s(sT2), s(sMEM)))
    A("s_lshl_b32 %s, %s, 2" % (s(sT2), s(sT2)))
    A("s_add_u32 %s, %s, %s" % (s(sT2), s(sT2), s(sT1)))
    A("s_lshl_b32 %s, %s, 12" % (s(sT2), s(sT2)))
    A("s_add_u32 %s, %s, %d" % (s(sT2), s(sT2), KV + L * KV_SZ))
    A("s_add_u32 %s, %s, 4096" % (s(sT3), s(sT2)))
    Lf, Lj, Lr = newlbl("nofill"), newlbl("nbjoin"), newlbl("retry")

    def nb_loads():
        for i in range(8):
            A("buffer_load_dwordx4 %s, %s, %s, %s offen offset:%d sc1" % (v(NB + 4 * i, 4), v(vL16), s(sWS, 4), s(sT2 + i // 4), (i % 4) * KB))

    NWO = int(ENV("NWO", "20"))
    A("s_lshl_b32 %s, %s, 2" % (s(sC1), s(sFG)))
    A("s_add_u32 %s, %s, %s" % (s(sC1), s(sC1), s(sWAVE)))
    A("s_mul_i32 %s, %s, %d" % (s(sC1), s(sC1), 28 * KB))
    A("s_add_u32 %s, %s, %d" % (s(sC1), s(sC1), WO))
    P.wo = load_frags(A, [a(4 * i, 4) for i in range(NWO)], sC1, nt("o"))
    if NWO and NWO < 28:
        A("s_add_u32 %s, %s, 4096" % (s(sC1), s(sC1)))
    A("s_cmp_lt_u32 %s, 2" % s(sT0))
    Ls = newlbl("skip1")
    A("s_cbranch_scc1 %s" % Ls)
    nb_loads()
    A.label(Ls)
    P.wo += load_frags(A, [a(4 * i, 4) for i in range(NWO, 28)], sC1, nt("o"))
    for r in range(16):
        A("v_mul_f32 %s, %s, %s" % (v(accQ + r), v(accQ + r), v(vA_)))
    A("s_mov_b32 %s, 0" % s(sEX))
    A("s_mov_b32 %s, -1" % s(sEX + 1))
    A("s_mov_b64 exec, %s" % s(sEX, 2))
    A("v_mov_b32 %s, 1.0" % v(accQ + 12))
    A("s_mov_b64 exec, -1")
    A.wait_all_lg()
    if L == 0:
        A("v_and_b32 %s, 15, %s" % (v(vT + 3), v(vLANE)))
        A("v_lshlrev_b32 %s, 2, %s" % (v(vT + 3), v(vT + 3)))
        A("s_lshl_b32 %s, %s, 7" % (s(sC0), s(sTEAM)))
        A("s_add_u32 %s, %s, %d" % (s(sC0), s(sC0), FLAGS + 4096))
        A("v_add_u32 %s, %s, %s" % (v(vT + 3), s(sC0), v(vT + 3)))
        poll(A, vT + 3, 1)
        A("v_cmp_ne_u32 vcc, %s, %s" % (s(sPURE), v(vT)))
        A("s_nop 1")
        A("s_cmp_eq_u64 vcc, 0")
        A("s_cselect_b32 %s, 1, 0" % s(sPURE))
        if ENV("FORCE_IMPURE") == "1":
            A("s_mov_b32 %s, 0" % s(sPURE))
    vm_mark = A.vm
    A("s_cmp_ge_u32 %s, 2" % s(sT0))
    A("s_cbranch_scc1 %s" % Lf)
    A("s_waitcnt vmcnt(%d)" % (28 - NWO))
    for i in range(32):
        A("v_mov_b32 %s, 0" % v(NB + i))
    A("s_mov_b32 %s, 0" % s(sEX))
    A("s_mov_b32 %s, -1" % s(sEX + 1))
    A("s_mov_b64 exec, %s" % s(sEX, 2))
    A("v_mov_b32 %s, 0xce6e" % v(NB + 4 + 2))
    A("v_mov_b32 %s, 0xce6e" % v(NB + 16 + 4 + 2))
    A("s_mov_b64 exec, -1")
    A("s_branch %s" % Lj)
    A.label(Lf)
    A("s_mov_b32 %s, 200000" % s(sCNT))
    A("s_waitcnt vmcnt(%d)" % (28 - NWO))
    A.label(Lr)
    A("v_max3_u32 %s, %s, %s, %s" % (v(vT), v(NB), v(NB + 1), v(NB + 2)))
    A("v_max3_u32 %s, %s, %s, %s" % (v(vT + 1), v(NB + 3), v(NB + 4), v(NB + 5)))
    for i in range(6, 32, 4):
        A("v_max3_u32 %s, %s, %s, %s" % (v(vT), v(vT), v(NB + i), v(NB + i + 1)))
        if i + 3 < 32:
            A("v_max3_u32 %s, %s, %s, %s" % (v(vT + 1), v(vT + 1), v(NB + i + 2), v(NB + i + 3)))
    A("v_max_u32 %s, %s, %s" % (v(vT), v(vT), v(vT + 1)))
    A("v_cmp_eq_u32 vcc, -1, %s" % v(vT))
    A("s_nop 1")
    A("s_cbranch_vccz %s" % Lj)
    A("s_sub_u32 %s, %s, 1" % (s(sCNT), s(sCNT)))
    A("s_cmp_eq_u32 %s, 0" % s(sCNT))
    A("s_cbranch_scc1 %s" % Lj)
    nb_loads()
    A("s_waitcnt vmcnt(0)")
    A("s_branch %s" % Lr)
    A.label(Lj)
    A.vm = vm_mark
    A("s_lshl_b32 %s, %s, 13" % (s(sT1), s(sWAVE)))
    A("v_add_u32 %s, %s, %s" % (v(vT + 2), s(sT1), v(vL16b)))
    for i in range(8):
        A("ds_write_b128 %s, %s offset:%d" % (v(vT + 2), v(NB + 4 * i, 4), REGB - 65536 + i * KB))
    P.post("kv%d" % L)
    A("s_lshl_b32 %s, %s, 2" % (s(sT0), s(sFG)))
    A("s_add_u32 %s, %s, %s" % (s(sT0), s(sT0), s(sWAVE)))
    A("s_mul_i32 %s, %s, %d" % (s(sT0), s(sT0), 28 * KB))
    A("s_add_u32 %s, %s, %d" % (s(sT0), s(sT0), WO))
    for i in range(8):
        A("v_cvt_pk_bf16_f32 %s, %s, %s" % (v(vQ + i), v(accQ + 2 * i), v(accQ + 2 * i + 1)))
    A("v_and_b32 %s, 31, %s" % (v(vT), v(vLANE)))
    A("v_lshrrev_b32 %s, 5, %s" % (v(vT + 1), v(vLANE)))
    A("v_lshlrev_b32 %s, 2, %s" % (v(vT + 1), v(vT + 1)))
    A("v_sub_u32 %s, %s, %s" % (v(vT), v(vT), v(vT + 1)))
    A("v_mov_b32 %s, 0" % v(vT + 1))
    A("v_mov_b32 %s, 0x%x" % (v(vT + 3), f32bits(-1e9)))
    for r in range(0, 16, 2):
        A("v_cmp_gt_i32 vcc, %d, %s" % (8 * (r >> 2) + (r & 3), v(vT)))
        A("v_cmp_gt_i32 %s, %d, %s" % (s(sEX, 2), 8 * ((r + 1) >> 2) + ((r + 1) & 3), v(vT)))
        A("v_cndmask_b32 %s, %s, %s, vcc" % (v(SA + r), v(vT + 3), v(vT + 1)))
        A("v_cndmask_b32 %s, %s, %s, vcc" % (v(SB_ + r), v(vT + 1), v(vT + 3)))
        A("v_cndmask_b32 %s, %s, %s, %s" % (v(SA + r + 1), v(vT + 3), v(vT + 1), s(sEX, 2)))
        A("v_cndmask_b32 %s, %s, %s, %s" % (v(SB_ + r + 1), v(vT + 1), v(vT + 3), s(sEX, 2)))
    A("s_lshl_b32 %s, %s, 12" % (s(sT1), s(sWAVE)))
    A("v_add_u32 %s, %s, %s" % (v(vT + 2), s(sT1), v(vL16b)))
    P.wait("x", "kv%d" % L)
    stamp(A, "P2.nb")
    wof = Fill()
    base = REGB - 65536
    vM = 4
    order = [1, 2, 3, 4, 5, 6, 7, 0, 8]
    buf = {}
    for i, t in enumerate(order):
        buf[t] = SA if t == 0 else SB_ if t == 8 else (SC_ if i % 2 == 0 else SD_)
    fr = [(t, h) for t in order for h in range(2)]
    rd = {}
    NKB = 3

    def issue(i):
        t, h = fr[i]
        rd[i] = A("ds_read_b128 %s, %s offset:%d" % (v(KBUF + (i % NKB) * 4, 4), v(vT + 2), base + t * 4096 + h * KB))

    issue(0)
    issue(1)
    A("v_mov_b32 %s, 0x%x" % (v(vM), f32bits(-3e38)))
    A("v_mov_b32 %s, 0x%x" % (v(vM + 1), f32bits(-3e38)))
    fill = Fill()

    def maxlist(b):
        return ["v_max3_f32 %s, %s, %s, %s" % (v(vM + (k & 1)), v(vM + (k & 1)), v(b + 2 * k), v(b + 2 * k + 1)) for k in range(8)]

    pend = []
    for i, (t, h) in enumerate(fr):
        A.wait(rd[i])
        d = v(buf[t], 16)
        c = d if (h == 1 or t in (0, 8)) else "0"
        A("%s %s, %s, %s, %s" % (MF32, d, v(KBUF + (i % NKB) * 4, 4), v(vQ + 4 * h, 4), c))
        if i + 2 < len(fr):
            issue(i + 2)
        if h == 1:
            if pend:
                fill.add(maxlist(pend.pop(0)))
            pend.append(buf[t])
        fill.emit(A, 8 if h == 1 else 0)
        if h == 0:
            wof.emit(A, 2)
    fill.flush(A)
    for it in maxlist(pend.pop(0)):
        A(it)
    A("v_max_f32 %s, %s, %s" % (v(vM), v(vM), v(vM + 1)))
    A("v_mov_b32 %s, %s" % (v(vM + 1), v(vM)))
    A("v_permlane32_swap_b32 %s, %s" % (v(vM), v(vM + 1)))
    A("v_max_f32 %s, %s, %s" % (v(vM), v(vM), v(vM + 1)))
    cs = (DH ** -0.5) * math.log2(math.e)
    A("s_mov_b32 %s, 0x%x" % (s(sC0), f32bits(cs)))
    A("v_mul_f32 %s, %s, %s" % (v(vM), s(sC0), v(vM)))

    def softmax_list(b):
        o = []
        for r in range(16):
            o.append("v_fma_f32 %s, %s, %s, -%s" % (v(b + r), v(b + r), s(sC0), v(vM)))
            if r >= 1:
                o.append("v_exp_f32 %s, %s" % (v(b + r - 1), v(b + r - 1)))
        o.append("v_exp_f32 %s, %s" % (v(b + 15), v(b + 15)))
        for i in range(8):
            o.append("v_cvt_pk_bf16_f32 %s, %s, %s" % (v(b + i), v(b + 2 * i), v(b + 2 * i + 1)))
        return o

    proc = [(0, SA), (8, SB_), (7, SC_), (6, SD_)]
    free_after = [SA, SB_, SC_, SD_]
    rec = [1, 2, 3, 4, 5]
    for k, t in enumerate(rec):
        proc.append((t, free_after[k % 4]))
    stream = []
    for k, (t, b) in enumerate(proc):
        stream += [("v", t, 0), ("v", t, 1)]
        if k < len(rec):
            stream += [("k", rec[k], 0), ("k", rec[k], 1)]
    rd = {}

    def issue2(i):
        kind, t, h = stream[i]
        rd[i] = A("ds_read_b128 %s, %s offset:%d" % (v(KBUF + (i % NKB) * 4, 4), v(vT + 2), base + t * 4096 + (2048 if kind == "v" else 0) + h * KB))

    issue2(0)
    issue2(1)
    si = 0
    first = True
    mf = []
    for k, (t, b) in enumerate(proc):
        sm = softmax_list(b)
        step = max(1, len(sm) // (len(mf) + 1)) if mf else 0
        for j, it in enumerate(sm):
            A(it)
            if mf and (j + 1) % step == 0:
                mf.pop(0)(A)
            if j % 8 == 3:
                wof.emit(A, 1)
        while mf:
            mf.pop(0)(A)

        def mk(i, dst, bop, c):
            def f(A):
                A.wait(rd[i])
                A("%s %s, %s, %s, %s" % (MF32, dst, v(KBUF + (i % NKB) * 4, 4), bop, c))
                if i + 2 < len(stream):
                    issue2(i + 2)
            return f

        mf.append(mk(si, v(accO, 16), v(b, 4), "0" if first else v(accO, 16)))
        mf.append(mk(si + 1, v(accO, 16), v(b + 4, 4), v(accO, 16)))
        first = False
        si += 2
        if k < len(rec):
            mf.append(mk(si, v(b, 16), v(vQ, 4), "0"))
            mf.append(mk(si + 1, v(b, 16), v(vQ + 4, 4), v(b, 16)))
            si += 2
    while mf:
        mf.pop(0)(A)
    wof.flush(A)
    P.post("kvfree%d" % L)
    stamp(A, "P2.pv")
    A("s_lshl_b32 %s, %s, 5" % (s(sT0), s(sGTG)))
    A("s_add_u32 %s, %s, %s" % (s(sT0), s(sT0), s(sMEM)))
    A("s_lshl_b32 %s, %s, 10" % (s(sT0), s(sT0)))
    A("s_add_u32 %s, %s, %d" % (s(sT0), s(sT0), OB + L * OB_SZ))
    A("v_mov_b32 %s, %s" % (v(vM), v(accO + 12)))
    A("v_mov_b32 %s, %s" % (v(vM + 1), v(accO + 12)))
    A("v_permlane32_swap_b32 %s, %s" % (v(vM), v(vM + 1)))
    A("v_rcp_f32 %s, %s" % (v(vM + 1), v(vM + 1)))
    for r in range(16):
        A("v_mul_f32 %s, %s, %s" % (v(accO + r), v(accO + r), v(vM + 1)))
    for i in range(8):
        A("v_cvt_pk_bf16_f32 %s, %s, %s" % (v(accO + i), v(accO + 2 * i), v(accO + 2 * i + 1)))
    lines = ["buffer_store_dwordx4 %s, %s, %s, %s offen offset:%d" % (v(accO + 4 * c, 4), v(vOST), s(sWS, 4), s(sT0), c * 512) for c in range(2)]
    if ENV("PT_O", "1") == "1":
        two_way(A, lines)
    else:
        for ln in lines:
            A(ln + " sc1")
    signal(A, 5 * L + 2)
    stamp(A, "P2.sig")


def reduce_finish(P, L, tag, flagval, final, hpart=False):
    A = P.A
    P.post("red%s" % tag)
    R = 16
    HS = 96 - 0
    hs = [96 + i for i in range(12)] + [8 + i for i in range(4)]
    if hpart:
        P.wait("h", "hred%s" % tag)
        toks = []
        for w in range(4):
            for c in range(4):
                toks.append(A("ds_read_b128 %s, %s offset:%d" % (v(R + (w * 4 + c) * 4, 4), v(vT + 3), w * RED_WAVE + c * 16)))
        A.wait(toks[7])
        for i in range(16):
            A("v_add_f32 %s, %s, %s" % (v(R + i), v(R + i), v(R + 16 + i)))
        A.wait(toks[15])
        P.post("hfree%s" % tag)
        for i in range(16):
            A("v_add_f32 %s, %s, %s" % (v(R + 32 + i), v(R + 32 + i), v(R + 48 + i)))
        for i in range(16):
            A("v_add_f32 %s, %s, %s" % (v(hs[i]), v(R + i), v(R + 32 + i)))
    P.wait("x", "red%s" % tag)
    toks = []
    for w in range(4):
        for c in range(4):
            toks.append(A("ds_read_b128 %s, %s offset:%d" % (v(R + (w * 4 + c) * 4, 4), v(vRED_R), w * RED_WAVE + c * 16)))
    RS = 80
    for i in range(8):
        A("v_lshlrev_b32 %s, 16, %s" % (v(RS + 2 * i), v(vRES + i)))
        A("v_and_b32 %s, 0xffff0000, %s" % (v(RS + 2 * i + 1), v(vRES + i)))
    A.wait(toks[7])
    for i in range(16):
        A("v_add_f32 %s, %s, %s" % (v(R + i), v(R + i), v(R + 16 + i)))
    if hpart:
        for i in range(16):
            A("v_add_f32 %s, %s, %s" % (v(R + i), v(R + i), v(hs[i])))
    A.wait(toks[15])
    P.post("redfree%s" % tag)
    for i in range(16):
        A("v_add_f32 %s, %s, %s" % (v(R + 32 + i), v(R + 32 + i), v(R + 48 + i)))
    for i in range(16):
        A("v_add_f32 %s, %s, %s" % (v(R + i), v(R + i), v(R + 32 + i)))
    for i in range(8):
        A("v_cvt_pk_bf16_f32 %s, %s, %s" % (v(R + 16 + i), v(R + 2 * i), v(R + 2 * i + 1)))
    for i in range(8):
        A("v_lshlrev_b32 %s, 16, %s" % (v(R + 2 * i), v(R + 16 + i)))
        A("v_and_b32 %s, 0xffff0000, %s" % (v(R + 2 * i + 1), v(R + 16 + i)))
    for i in range(16):
        A("v_add_f32 %s, %s, %s" % (v(R + i), v(R + i), v(RS + i)))
    for i in range(8):
        A("v_cvt_pk_bf16_f32 %s, %s, %s" % (v(vRES + i), v(R + 2 * i), v(R + 2 * i + 1)))
    A("s_mov_b32 %s, 0x7f7f7f7f" % s(sEX))
    A("s_mov_b32 %s, 0x7f7f7f7f" % s(sEX + 1))
    if final:
        A("s_mov_b64 exec, %s" % s(sEX, 2))
        for c in range(2):
            A("buffer_store_dwordx4 %s, %s, %s, 0 offen offset:%d" % (v(vRES + 4 * c, 4), v(vOUTO), s(sOUT, 4), c * 16) + ENV("OS", ""))
        A("s_mov_b64 exec, -1")
        return
    A("s_mov_b32 %s, %d" % (s(sT0), XF))
    for q in range(4):
        A("v_mov_b32 %s, 0" % v(R + 48 + q))
    A("s_mov_b64 exec, %s" % s(sEX, 2))
    two_way(A, ["buffer_store_dwordx4 %s, %s, %s, %s offen offset:%d" % (v(vRES + 4 * c, 4), v(vXST), s(sWS, 4), s(sT0), c * 512) for c in range(2)])
    for i in range(8):
        A("v_lshlrev_b32 %s, 16, %s" % (v(R), v(vRES + i)))
        A("v_and_b32 %s, 0xffff0000, %s" % (v(R + 1), v(vRES + i)))
        A("v_add_f32 %s, %s, %s" % (v(R + 48), v(R + 48), v(R)))
        A("v_fmac_f32 %s, %s, %s" % (v(R + 49), v(R), v(R)))
        A("v_add_f32 %s, %s, %s" % (v(R + 50), v(R + 50), v(R + 1)))
        A("v_fmac_f32 %s, %s, %s" % (v(R + 51), v(R + 1), v(R + 1)))
    A("s_mov_b64 exec, -1")
    A("v_add_f32 %s, %s, %s" % (v(R + 48), v(R + 48), v(R + 50)))
    A("v_add_f32 %s, %s, %s" % (v(R + 49), v(R + 49), v(R + 51)))
    src, dst = 48, 50
    for mod in ("quad_perm:[1,0,3,2]", "quad_perm:[2,3,0,1]", "row_half_mirror"):
        for q in range(2):
            A("v_add_f32_dpp %s, %s, %s %s row_mask:0xf bank_mask:0xf" % (v(R + dst + q), v(R + src + q), v(R + src + q), mod))
        src, dst = dst, src
    A("s_mov_b32 %s, 0x01010101" % s(sEX))
    A("s_mov_b32 %s, 0x01010101" % s(sEX + 1))
    A("s_mov_b32 %s, %d" % (s(sT0), ST))
    A("s_mov_b64 exec, %s" % s(sEX, 2))
    two_way(A, ["buffer_store_dwordx2 %s, %s, %s, %s offen" % (v(R + src, 2), v(vSTO), s(sWS, 4), s(sT0))])
    A("s_mov_b64 exec, -1")
    signal(A, flagval)


def red_write(A, acc, k):
    A("ds_write_b128 %s, %s offset:%d" % (v(vRED_W), v(acc + k * 4, 4), (k // 7) * 16 * RED_PITCH + (k % 7) * 64))


def phase3(P, L):
    A = P.A
    A.comment("================ P3 layer %d" % L)
    A("s_lshl_b32 %s, %s, 5" % (s(sT0), s(sOTG)))
    A("s_lshl_b32 %s, %s, 2" % (s(sT1), s(sWAVE)))
    A("s_add_u32 %s, %s, %s" % (s(sT0), s(sT0), s(sT1)))
    A("s_lshl_b32 %s, %s, 10" % (s(sT0), s(sT0)))
    A("s_add_u32 %s, %s, %d" % (s(sT0), s(sT0), OB + L * OB_SZ))
    A("s_add_u32 %s, %s, %d" % (s(sT1), s(sT0), 16 * KB))
    polla(A, aPB, 5 * L + 2)
    stamp(A, "P3.polled")
    XO, acc = 72, 16
    xt = {}
    for ks in range(4):
        for tt in range(2):
            xt[(tt, ks)] = A("buffer_load_dwordx4 %s, %s, %s, %s offen offset:%d" % (v(XO + (tt * 4 + ks) * 4, 4), v(vL16), s(sWS, 4), s(sT0 + tt), ks * KB))
    P.wait("x", "kvfree%d" % L)
    for ks in range(4):
        for tt in range(2):
            A.wait(xt[(tt, ks)])
            for ft in range(7):
                d = v(acc + (tt * 7 + ft) * 4, 4)
                A("%s %s, %s, %s, %s" % (MF16, d, a((ks * 7 + ft) * 4, 4), v(XO + (tt * 4 + ks) * 4, 4), "0" if ks == 0 else d))
                if ks == 3 and (tt * 7 + ft) >= 5:
                    red_write(A, acc, tt * 7 + ft - 5)
    for k in range(9, 14):
        red_write(A, acc, k)
    stamp(A, "P3.mfma")
    reduce_finish(P, L, "3_%d" % L, 5 * L + 3, False)
    stamp(A, "P3.sig")


def gelu_list(acc, vK0, vK1, vS2, tmp, out, store):
    o = []
    for r in range(8):
        o.append("v_mul_f32 %s, %s, %s" % (v(tmp + r), v(acc + r), v(acc + r)))
    for r in range(8):
        o.append("v_fma_f32 %s, %s, %s, %s" % (v(tmp + r), v(tmp + r), v(vK1), v(vK0)))
    for r in range(8):
        o.append("v_mul_f32 %s, %s, %s" % (v(tmp + r), v(tmp + r), v(acc + r)))
    for r in range(8):
        o.append("v_exp_f32 %s, %s" % (v(tmp + r), v(tmp + r)))
        o.append("v_mul_f32 %s, %s, %s" % (v(acc + r), v(acc + r), v(acc + 8 + r)))
    for r in range(8):
        o.append("v_fma_f32 %s, %s, %s, %s" % (v(tmp + r), v(tmp + r), v(vS2), v(vS2)))
    for r in range(8):
        o.append("v_rcp_f32 %s, %s" % (v(tmp + r), v(tmp + r)))
    for r in range(8):
        o.append("v_mul_f32 %s, %s, %s" % (v(tmp + r), v(acc + r), v(tmp + r)))
    for i in range(4):
        o.append("v_cvt_pk_bf16_f32 %s, %s, %s" % (v(out + i), v(tmp + 2 * i), v(tmp + 2 * i + 1)))
    o.append(store)
    return o


def phase4(P, L):
    A = P.A
    A.comment("================ P4 layer %d" % L)
    A("s_mul_i32 %s, %s, 112" % (s(sT3), s(sGTG)))
    A("s_mul_i32 %s, %s, 7" % (s(sT2), s(sMEM)))
    A("s_add_u32 %s, %s, %s" % (s(sT3), s(sT3), s(sT2)))
    A("s_lshl_b32 %s, %s, 10" % (s(sT3), s(sT3)))
    A("s_add_u32 %s, %s, %d" % (s(sT3), s(sT3), HB + L * HB_SZ))
    A("s_add_u32 %s, %s, 4096" % (s(sT1), s(sT3)))
    polla(A, aPA, 5 * L + 3)
    stamp(A, "P4.polled")
    vS, vA_, vSD, vAUG = 96, 104, 105, 100
    vK0, vK1, vS2 = 13, 14, 12
    accs = [16, 32, 48, 64]
    RING, DEPTH = mkring(80, 4), 5
    TMP, OUTS = 96, [104, 8]
    xt, stt, rest = load_x_and_stats(A, vS, " sc1", int(ENV("NF", "28")))
    c0 = -2.0 * math.sqrt(2.0 / math.pi) * math.log2(math.e)
    fill = Fill()
    xop = lambda st_: a(4 * st_, 4)
    ops = []
    for st_ in range(29):
        for t in range(3):
            o1 = Op(GSLOT[t] * TILE + st_ * KB, mf32(A, accs[t], st_ == 0, False, xop(st_)))
            if st_ < 28 and t == 0:
                o1.before.append(lambda st_=st_: A.wait(xt[st_]))
            ops.append(o1)
    start = {0: 0}
    for t in range(3, 7):
        start[t] = len(ops)
        for st_ in range(29):
            ops.append(Op(GSLOT[t] * TILE + st_ * KB, mf32(A, accs[t % 4], st_ == 0, False, xop(st_)), slots=int(ENV("P4SLOTS", "5"))))
    for k, f in enumerate(rest):
        ops[2 * k].after.append(f)
    ops[max(0, 2 * (len(rest) - 1))].after.append(lambda: P.post("xl4_%d" % L))
    gate(P, ops, 0, DEPTH, "h", "g2_%d" % L)
    for t in range(3, 7):
        gate(P, ops, start[t], DEPTH, "h", "g%d_%d" % (t, L), lead=int(ENV("GLEAD", "8")))
        ops[start[t]].after.append(lambda t=t: P.post("gd%d_%d" % (t - 1, L)))
    marks = {}

    def stats_hook():
        A.wait(*stt)
        lst = ln_stats_list(vS, vA_, vSD, vAUG)
        lst += ["v_mul_f32 %s, 0x%x, %s" % (v(vK0), f32bits(c0), v(vA_)),
                "v_mul_f32 %s, %s, %s" % (v(vK1), v(vA_), v(vA_)),
                "v_mul_f32 %s, %s, %s" % (v(vK1), v(vK1), v(vK0)),
                "v_mul_f32 %s, 0x%x, %s" % (v(vK1), f32bits(0.044715), v(vK1)),
                "v_mul_f32 %s, %s, %s" % (v(vS2), v(vSD), v(vSD))]
        marks["st"] = fill.add(lst)

    ops[3 * 12].before.append(stats_hook)
    ops[3 * 27].before.append(lambda: fill.until(A, marks["st"]))

    def epi(t):
        out = OUTS[t % 2]
        ln = "buffer_store_dwordx4 %s, %s, %s, %s offen offset:%d" % (v(out, 4), v(vL16), s(sWS, 4), s(sT3 if t < 4 else sT1), (t % 4) * KB)
        if ENV("PT_H", "0") == "1":
            st_ = lambda A, ln=ln: two_way(A, [ln])
        else:
            st_ = ln + " sc1"
        return gelu_list(accs[t % 4], vK0, vK1, vS2, TMP, out, st_)

    def add_epi(t):
        marks[t] = fill.add(epi(t))

    ops[start[3] + 1].after.append(lambda: (add_epi(0), add_epi(1), add_epi(2)))
    for t in range(4, 7):
        ops[start[t]].before.append(lambda t=t: fill.until(A, marks[t - 4]))
        ops[start[t] + 1].after.append(lambda t=t: add_epi(t - 1))
    if STAMPS is not None:
        ops[start[3]].before.append(lambda: stamp(A, "P4.g012"))
        if ENV("DETAIL") == "P4":
            for t in range(4, 7):
                ops[start[t]].before.append(lambda t=t: stamp(A, "P4.t%d" % t))
    run_stream(A, ops, RING, DEPTH, fill)
    P.post("gd6_%d" % L)
    stamp(A, "P4.g6")
    fill.flush(A)
    fill.add(epi(6))
    fill.flush(A)
    signal(A, 5 * L + 4)
    stamp(A, "P4.sig")


def phase5(P, L):
    A = P.A
    A.comment("================ P5 layer %d" % L)
    acc = 16
    RING, DEPTH = mkring(72, 6, False), 5
    vHL, vDW = 96, 97
    A("v_and_b32 %s, 15, %s" % (v(vHL), v(vLANE)))
    A("v_lshlrev_b32 %s, 4, %s" % (v(vHL), v(vHL)))
    A("v_lshrrev_b32 %s, 4, %s" % (v(vT), v(vLANE)))
    A("v_lshl_add_u32 %s, %s, 9, %s" % (v(vHL), v(vT), v(vHL)))
    A("s_mul_i32 %s, %s, %d" % (s(sT2), s(sWAVE), 7 * KB))
    A("v_add_u32 %s, %s, %s" % (v(vDW), s(sT2), v(vL16)))
    A("v_add_u32 %s, %s, %s" % (v(vDW + 1), s(sT2), v(vL16b)))
    A("v_add_u32 %s, %s, %s" % (v(vDW + 2), s(sT2), v(vL16c)))
    A("s_mul_i32 %s, %s, 112" % (s(sT0), s(sOTG)))
    A("s_mul_i32 %s, %s, 28" % (s(sT1), s(sWAVE)))
    A("s_add_u32 %s, %s, %s" % (s(sT0), s(sT0), s(sT1)))
    A("s_lshl_b32 %s, %s, 10" % (s(sT0), s(sT0)))
    A("s_add_u32 %s, %s, %d" % (s(sT0), s(sT0), HB + L * HB_SZ))
    polla(A, aPB, 5 * L + 4)
    stamp(A, "P5.polled")
    A("s_setprio 0")
    xt = {}
    for ks in range(NX5):
        for tt in range(2):
            xt[(tt, ks)] = A("buffer_load_dwordx4 %s, %s, %s, %s offen offset:%d%s" % (a((ks * 2 + tt) * 4, 4), v(vHL), s(sWS, 4), s(sT0), (ks % 2) * 2048 + tt * 256, nt("h")))
        if ks % 2 == 1 and ks < NX5 - 1:
            A("s_add_u32 %s, %s, 4096" % (s(sT0), s(sT0)))
        if ks == 1:
            P.post("xl5_%d" % L)
    if ENV("DETAIL") == "H":
        stamp(A, "P5.issued")
        A.wait_all_vm()
        stamp(A, "P5.harr")

    def addr(off):
        if off < 65536:
            return v(vDW), off
        if off < 131072:
            return v(vDW + 1), off - 65536
        return v(vDW + 2), off - 131072

    ops = []
    for ks in range(NX5):
        for ft in range(7):
            def em(w, ks=ks, ft=ft):
                for tt in range(2):
                    d = v(acc + (tt * 7 + ft) * 4, 4)
                    A("%s %s, %s, %s, %s" % (MF16, d, w, a((ks * 2 + tt) * 4, 4), "0" if ks == 0 else d))
            op = Op(DSLOT[ks] * TILE + ft * KB, em)
            if ft == 0:
                op.before.append(lambda ks=ks: A.wait(xt[(0, ks)], xt[(1, ks)]))
                if ks > 0:
                    op.after.append(lambda ks=ks: P.post("dd%d_%d" % (ks - 1, L)))
            ops.append(op)
    gate(P, ops, 0, DEPTH, "h", "d4_%d" % L, own=True)
    dtok = {}

    def xdma(j):
        A("s_mul_i32 %s, %s, %d" % (s(sT0), s(sFG), 14 * 28 * KB))
        A("s_add_u32 %s, %s, %s" % (s(sT0), s(sT0), s(sT2)))
        A("s_add_u32 %s, %s, %d" % (s(sT0), s(sT0), WD + j * 28 * KB))
        A("s_add_u32 %s, %s, %d" % (s(sT1), s(sT2), DSLOT[j] * TILE))
        dtok[j] = []
        for i in range(7):
            if i % 4 == 0:
                A("s_mov_b32 m0, %s" % s(sT1))
            dtok[j].append(A("buffer_load_dwordx4 %s, %s, %s offen offset:%d%s lds" % (v(vL16), s(sWS, 4), s(sT0), (i % 4) * KB, nt("d"))))
            if i == 3:
                A("s_add_u32 %s, %s, 4096" % (s(sT0), s(sT0)))
                A("s_add_u32 %s, %s, 4096" % (s(sT1), s(sT1)))

    for ks in range(5, NX5):
        ops[(ks - 5) * 7 + 6].after.append(lambda ks=ks: xdma(ks))
        ops[ks * 7].pre.append(lambda ks=ks: A.wait(*dtok[ks]))
    if STAMPS is not None and L == 1 and ENV("DETAIL") == "P5":
        for ks in (1, 2, 3, 4, 5, 6, 7, 8):
            ops[ks * 7].after.append(lambda ks=ks: stamp(A, "P5.k%d" % ks))
    run_stream(A, ops, RING, DEPTH, None, addr=addr)
    P.post("dd%d_%d" % (NX5 - 1, L))
    A("s_setprio 3")
    A("v_subrev_u32 %s, %d, %s" % (v(vT + 3), REGB - REG2, v(vRED_R)))
    P.wait("x", "dd7_%d" % L)
    for k in range(14):
        red_write(A, acc, k)
    stamp(A, "P5.mfma")
    reduce_finish(P, L, "5_%d" % L, 5 * L + 5, L == 1, hpart=True)
    stamp(A, "P5.sig")


def gen_helper(P):
    A = P.A
    T = {}
    A("v_add_u32 %s, 0x10000, %s" % (v(vL16b), v(vL16)))
    A("v_add_u32 %s, 0x20000, %s" % (v(vL16c), v(vL16)))
    A("s_mul_i32 %s, %s, %d" % (s(sT3), s(sHW), 7 * KB))
    A("v_lshlrev_b32 v123, 7, %s" % v(vLANE))
    A("s_lshl_b32 %s, %s, 2" % (s(sT0), s(sTEAM)))
    A("s_add_u32 %s, %s, %s" % (s(sGTG), s(sT0), s(sHW)))

    def dma(key, sidx, stride, gbase, n, slot):
        A("s_mul_i32 %s, %s, %d" % (s(sT0), s(sidx), stride))
        A("s_add_u32 %s, %s, %s" % (s(sT0), s(sT0), s(sT3)))
        A("s_add_u32 %s, %s, %d" % (s(sT0), s(sT0), gbase))
        A("s_add_u32 %s, %s, %d" % (s(sT1), s(sT3), slot * TILE))
        toks = []
        for i in range(n):
            if i % 4 == 0:
                A("s_mov_b32 m0, %s" % s(sT1))
            toks.append(A("buffer_load_dwordx4 %s, %s, %s offen offset:%d%s lds" % (v(vL16), s(sWS, 4), s(sT0), (i % 4) * KB, nt(key[0]))))
            if i % 4 == 3 and i + 1 < n:
                A("s_add_u32 %s, %s, 4096" % (s(sT0), s(sT0)))
                A("s_add_u32 %s, %s, 4096" % (s(sT1), s(sT1)))
        T[key] = toks

    q = lambda L, p: dma(("q", L, p), sMEM, 3 * TILE, WQKV + p * TILE, 8, QSLOT[L][p])
    g = lambda L, t: dma(("g", L, t), sMEM, 7 * TILE, WGU + t * TILE, 8, GSLOT[t])
    d = lambda L, j: dma(("d", L, j), sFG, 14 * 28 * KB, WD + j * 28 * KB, 7, DSLOT[j])

    HACC = 0

    def sreg(j, i):
        k = (j - NX5) * 7 + i
        return a(56 + 4 * k, 4) if k < 18 else v(8 + 4 * (k - 18), 4)

    hreg = lambda j, tt: v(76 + ((j - NX5) * 2 + tt) * 4, 4)

    def stage(j):
        A("s_mul_i32 %s, %s, %d" % (s(sT0), s(sFG), 14 * 28 * KB))
        A("s_add_u32 %s, %s, %s" % (s(sT0), s(sT0), s(sT3)))
        A("s_add_u32 %s, %s, %d" % (s(sT0), s(sT0), WD + j * 28 * KB))
        T[("s", j)] = load_frags(A, [sreg(j, i) for i in range(7)], sT0, nt("d"))

    A("v_and_b32 v120, 15, %s" % v(vLANE))
    A("v_lshlrev_b32 v120, 4, v120")
    A("v_lshrrev_b32 v121, 4, %s" % v(vLANE))
    A("v_lshl_add_u32 v120, v121, 9, v120")
    A("v_and_b32 v122, 15, %s" % v(vLANE))
    A("v_mul_u32_u24 v122, %d, v122" % RED_PITCH)
    A("v_lshl_add_u32 v122, v121, 4, v122")
    A("s_mul_i32 %s, %s, %d" % (s(sT0), s(sHW), RED_WAVE))
    A("s_add_u32 %s, %s, %d" % (s(sT0), s(sT0), REG2))
    A("v_add_u32 v121, %s, v122" % s(sT0))
    A("s_lshl_b32 %s, %s, 2" % (s(sT0), s(sTEAM)))
    A("s_add_u32 %s, %s, %s" % (s(sOTG), s(sT0), s(sTG)))

    def landed(name, *keys):
        A.wait(*[T[k] for k in keys])
        P.post(name)

    def warm(sidx, stride, gbase, nbytes, nshare_sel):
        nshare, ssel = nshare_sel
        part = nbytes // (nshare * 4)
        assert part <= 8192
        A("s_mul_i32 %s, %s, %d" % (s(sT0), s(sidx), stride))
        A("s_lshl_b32 %s, %s, 2" % (s(sT1), s(ssel)))
        A("s_add_u32 %s, %s, %s" % (s(sT1), s(sT1), s(sHW)))
        A("s_mul_i32 %s, %s, %d" % (s(sT1), s(sT1), part))
        A("s_add_u32 %s, %s, %s" % (s(sT0), s(sT0), s(sT1)))
        A("s_add_u32 %s, %s, %d" % (s(sT0), s(sT0), gbase))
        nl = (part + 127) // 128 + 1
        if nl < 64:
            A("s_mov_b64 exec, 0x%x" % ((1 << nl) - 1) if nl <= 31 else "s_mov_b64 exec, -1")
        A("buffer_load_dword v124, v123, %s, %s offen" % (s(sWS, 4), s(sT0)))
        A("s_mov_b64 exec, -1")

    A("s_lshl_b32 %s, %s, 2" % (s(sC0), s(sHALF)))
    A("s_add_u32 %s, %s, %s" % (s(sC0), s(sC0), s(sTG)))
    warm_wo = lambda: warm(sFG, 112 * KB, WO, 112 * KB, (8, sC0))
    warm_q = lambda: [warm(sMEM, 3 * TILE, WQKV + p * 2 * TILE, (2 * TILE if p == 0 else TILE), (2, sHALF)) for p in range(2)]
    warm_d58 = lambda: warm(sFG, 14 * 28 * KB, WD + 5 * 28 * KB, 4 * 28 * KB, (8, sC0))
    warm_g = lambda t0: warm(sMEM, 7 * TILE, WGU + t0 * TILE, 2 * TILE, (2, sHALF))

    def touch_o(L):
        A("s_lshl_b32 %s, %s, 5" % (s(sT0), s(sGTG)))
        A("s_add_u32 %s, %s, %s" % (s(sT0), s(sT0), s(sMEM)))
        A("s_lshl_b32 %s, %s, 10" % (s(sT0), s(sT0)))
        A("s_add_u32 %s, %s, %d" % (s(sT0), s(sT0), OB + L * OB_SZ))
        A("s_add_u32 %s, %s, %d" % (s(sT1), s(sT0), 16 * KB))
        A("s_mov_b64 exec, 0xff")
        A("buffer_load_dword v124, v123, %s, %s offen" % (s(sWS, 4), s(sT0)))
        A("buffer_load_dword v124, v123, %s, %s offen" % (s(sWS, 4), s(sT1)))
        A("s_mov_b64 exec, -1")

    def touch_h(L):
        A("s_mul_i32 %s, %s, 112" % (s(sT0), s(sGTG)))
        A("s_mul_i32 %s, %s, 7" % (s(sT1), s(sMEM)))
        A("s_add_u32 %s, %s, %s" % (s(sT0), s(sT0), s(sT1)))
        A("s_lshl_b32 %s, %s, 10" % (s(sT0), s(sT0)))
        A("s_add_u32 %s, %s, %d" % (s(sT0), s(sT0), HB + L * HB_SZ))
        A("s_mov_b32 %s, -1" % s(sEX))
        A("s_mov_b32 %s, 0x00ffffff" % s(sEX + 1))
        A("s_mov_b64 exec, %s" % s(sEX, 2))
        A("buffer_load_dword v124, v123, %s, %s offen" % (s(sWS, 4), s(sT0)))
        A("s_mov_b64 exec, -1")

    NS0 = int(ENV("NS0", "0"))
    for L in range(2):
        if L == 0:
            A("s_mul_i32 %s, %s, %d" % (s(sT0), s(sMEM), 3 * TILE))
            A("s_add_u32 %s, %s, %d" % (s(sT0), s(sT0), WQKV))
            T["kvq"] = []
            for i in range(8):
                A("s_add_u32 %s, %s, %d" % (s(sT1), s(sHW), 4 * i))
                if i == 7:
                    A("s_min_u32 %s, %s, 28" % (s(sT1), s(sT1)))
                A("s_lshl_b32 %s, %s, 10" % (s(sT1), s(sT1)))
                for p_ in (1, 2):
                    A("s_add_u32 %s, %s, %d" % (s(sT2), s(sT1), QSLOT[0][p_] * TILE))
                    A("s_mov_b32 m0, %s" % s(sT2))
                    A("s_add_u32 %s, %s, %s" % (s(sC1), s(sT0), s(sT1)))
                    A("s_add_u32 %s, %s, %d" % (s(sC1), s(sC1), p_ * TILE))
                    T["kvq"].append(A("buffer_load_dwordx4 %s, %s, %s offen lds" % (v(vL16), s(sWS, 4), s(sC1))))
            P.wait("x", "xl1_0")
            q(0, 0)
        if L == 0:
            for qq in range(3):
                A.wait(*T["kvq"][:4 * (qq + 1)])
                P.post("kvp%d" % qq)
            A.wait(*T["kvq"])
            P.post("kv_w0")
            A("s_lshl_b32 %s, %s, 7" % (s(sT0), s(sTEAM)))
            A("s_lshl_b32 %s, %s, 2" % (s(sT1), s(sMEM)))
            A("s_add_u32 %s, %s, %s" % (s(sT0), s(sT0), s(sT1)))
            A("s_add_u32 %s, %s, %d" % (s(sT0), s(sT0), FLAGS + 4096))
            A("v_mov_b32 v124, %s" % s(sPURE))
            A("v_mov_b32 v127, 0")
            Lx = newlbl("xcc")
            A("s_cmp_lg_u32 %s, 0" % s(sHW))
            A("s_cbranch_scc1 %s" % Lx)
            A("s_mov_b64 exec, 1")
            A("buffer_store_dword v124, v127, %s, %s offen sc1" % (s(sWS, 4), s(sT0)))
            A("s_mov_b64 exec, -1")
            A.label(Lx)
            A("s_lshl_b32 %s, %s, 4" % (s(sT0), s(sTEAM)))
            A("s_add_u32 %s, %s, %s" % (s(sT0), s(sT0), s(sMEM)))
            A("s_lshl_b32 %s, %s, 2" % (s(sT0), s(sT0)))
            A("s_add_u32 %s, %s, %s" % (s(sT0), s(sT0), s(sHW)))
            A("s_lshl_b32 %s, %s, 12" % (s(sT0), s(sT0)))
            A("s_add_u32 %s, %s, %d" % (s(sT0), s(sT0), KV + KV_SZ))
            for i in range(4):
                A("v_mov_b32 %s, -1" % v(76 + i))
            T["fill"] = [A("buffer_store_dwordx4 v[76:79], %s, %s, %s offen offset:%d sc1" % (v(vL16), s(sWS, 4), s(sT0), i * KB)) for i in range(4)]
            warm_wo()
            if ENV("PT_O", "1") == "1":
                touch_o(0)
            if ENV("S_G0", "0") == "1":
                warm_g(0)
            if ENV("S_G2", "0") == "1":
                warm_g(2)
        else:
            landed("kv_w%d" % L, ("q", L, 1), ("q", L, 2))
        landed("q_w%d" % L, ("q", L, 0), "fill")
        hstamp(A, "q.landed")
        if L > 0:
            P.wait("x", "xl1_%d" % L)
            warm_wo()
            if ENV("PT_O", "1") == "1":
                touch_o(L)
        else:
            for j in range(NX5, NX5 + NS0):
                stage(j)
        P.wait("x", "kv%d" % L)
        for t in (0, 1, 2):
            g(L, t)
        if ENV("B_G3", "0") == "1":
            warm_g(3)
        landed("g2_%d" % L, ("g", L, 0), ("g", L, 1), ("g", L, 2))
        hstamp(A, "g012.landed")
        P.wait("x", "xl4_%d" % L)
        g(L, 3)
        g(L, 4)
        if ENV("WC_G", "1") == "1":
            warm_g(5)
        landed("g3_%d" % L, ("g", L, 3))
        landed("g4_%d" % L, ("g", L, 4))
        hstamp(A, "g34.landed")
        if ENV("C_D58", "1") == "1":
            warm_d58()
        P.wait("x", "gd2_%d" % L)
        hstamp(A, "gd2")
        g(L, 5)
        g(L, 6)
        d(L, 0)
        landed("g5_%d" % L, ("g", L, 5))
        landed("g6_%d" % L, ("g", L, 6))
        hstamp(A, "g56.landed")
        if ENV("C_D58", "1") == "2":
            warm_d58()
        if L == 0:
            for j in range(NX5 + NS0, 14):
                stage(j)
        for j in range(1, 5):
            P.wait("x", "gd%d_%d" % (j + 2, L))
            d(L, j)
        landed("d4_%d" % L, *[("d", L, j) for j in range(5)])
        hstamp(A, "d04.landed")
        A("s_mul_i32 %s, %s, 112" % (s(sT2), s(sOTG)))
        A("s_mul_i32 %s, %s, 28" % (s(sT1), s(sHW)))
        A("s_add_u32 %s, %s, %s" % (s(sT2), s(sT2), s(sT1)))
        A("s_lshl_b32 %s, %s, 10" % (s(sT2), s(sT2)))
        A("s_add_u32 %s, %s, %d" % (s(sT2), s(sT2), HB + L * HB_SZ + NX5 * 2048))
        P.wait("x", "xl5_%d" % L, own=True)
        hstamp(A, "xl5")
        ht = {}
        for j in range(NX5, 14):
            for tt in range(2):
                ht[(j, tt)] = A("buffer_load_dwordx4 %s, v120, %s, %s offen offset:%d" % (hreg(j, tt), s(sWS, 4), s(sT2), tt * 256))
            A("s_add_u32 %s, %s, 2048" % (s(sT2), s(sT2)))
        for j in range(NX5, 14):
            k = j - NX5
            A.wait(ht[(j, 0)], ht[(j, 1)], *T[("s", j)])
            for ft in range(7):
                for tt in range(2):
                    dd = a(HACC + (tt * 7 + ft) * 4, 4)
                    A("%s %s, %s, %s, %s" % (MF16, dd, sreg(j, ft), hreg(j, tt), "0" if j == NX5 else dd))
            if L == 1:
                hstamp(A, "hs%d" % j)
        if L == 0:
            warm_q()
        P.wait("x", "dd5_%d" % L)
        for k in range(14):
            A("ds_write_b128 v121, %s offset:%d" % (a(HACC + k * 4, 4), (k // 7) * 16 * RED_PITCH + (k % 7) * 64))
        P.post("hred5_%d" % L)
        hstamp(A, "hred")
        if L == 0:
            P.wait("x", "dd8_%d" % L)
            q(1, 1)
            P.wait("x", "hfree5_%d" % L)
            q(1, 2)
            q(1, 0)


def gen_main():
    A = Asm()
    kernel_head(A, "main_kernel")
    A("s_cmp_ge_u32 s2, 256")
    A("s_cbranch_scc1 Lmain_end")
    A("s_load_dwordx2 s[30:31], s[0:1], 0")
    A("s_load_dwordx2 s[32:33], s[0:1], 56")
    A("s_load_dwordx4 s[52:55], s[0:1], 64")
    A("v_lshrrev_b32 v4, 6, v0")
    A("v_and_b32 v0, 63, v0")
    A("v_readfirstlane_b32 %s, v4" % s(sWAVE))
    A("v_lshlrev_b32 %s, 4, v0" % v(vL16))
    if ENV("CODEWARM", "0") == "1":
        A("s_getpc_b64 s[56:57]")
        A.raw("Lpc0:")
        A("s_sub_u32 s56, s56, Lpc0-main_kernel")
        A("s_subb_u32 s57, s57, 0")
        A("s_lshr_b32 %s, s2, 3" % s(sT0))
        A("s_lshl_b32 %s, %s, 3" % (s(sT0), s(sT0)))
        A("s_add_u32 %s, %s, %s" % (s(sT0), s(sT0), s(sWAVE)))
        A("s_lshl_b32 %s, %s, 9" % (s(sT0), s(sT0)))
        A("v_and_b32 v5, 3, v0")
        A("v_lshlrev_b32 v5, 7, v5")
        A("v_add_u32 v5, %s, v5" % s(sT0))
        A("v_min_u32 v5, Lmain_end-main_kernel, v5")
        A("s_mov_b64 exec, 15")
        A("global_load_dword a127, v5, s[56:57]")
        A("s_mov_b64 exec, -1")
    A("s_and_b32 %s, s2, 7" % s(sTEAM))
    A("s_lshl_b32 %s, %s, 1" % (s(sTEAM), s(sTEAM)))
    A("s_lshr_b32 %s, s2, 7" % s(sHALF))
    A("s_add_u32 %s, %s, %s" % (s(sTEAM), s(sTEAM), s(sHALF)))
    A("s_lshr_b32 %s, s2, 3" % s(sMEM))
    A("s_and_b32 %s, %s, 15" % (s(sMEM), s(sMEM)))
    A("s_lshr_b32 %s, %s, 2" % (s(sTG), s(sMEM)))
    A("s_and_b32 %s, %s, 3" % (s(sFG), s(sMEM)))
    A("s_and_b32 %s, %s, 3" % (s(sHW), s(sWAVE)))
    A("s_lshl_b32 %s, %s, 2" % (s(sFLW), s(sWAVE)))
    A("s_xor_b32 %s, %s, 16" % (s(sFLP), s(sFLW)))
    A("s_add_u32 %s, %s, %d" % (s(sFLW), s(sFLW), FL))
    A("s_add_u32 %s, %s, %d" % (s(sFLP), s(sFLP), FL))
    A("v_mov_b32 %s, %s" % (v(vFA), s(sFLW)))
    A("v_mov_b32 v5, 0")
    A("ds_write_b32 %s, v5" % v(vFA))
    A("s_getreg_b32 %s, hwreg(HW_REG_XCC_ID)" % s(sPURE))
    A("s_and_b32 %s, %s, 15" % (s(sPURE), s(sPURE)))
    A("s_add_u32 %s, %s, 1" % (s(sPURE), s(sPURE)))
    A("s_waitcnt lgkmcnt(0)")
    A.lg_done = A.lg
    srd(A, sWS, 54, 55, WS_BYTES)
    srd(A, sX, 30, 31, 2048 * 896)
    srd(A, sOUT, 32, 33, 2048 * 896)
    srd(A, sDBG, 52, 53, 256)
    A("s_barrier")
    A("s_cmp_ge_u32 %s, 4" % s(sWAVE))
    A("s_cbranch_scc1 Lhelper")
    A("s_setprio 3")
    A("v_add_u32 %s, 0x10000, %s" % (v(vL16b), v(vL16)))
    A("v_add_u32 %s, 0x20000, %s" % (v(vL16c), v(vL16)))
    A("s_lshl_b32 %s, %s, 2" % (s(sT0), s(sTEAM)))
    A("s_add_u32 %s, %s, %s" % (s(sGTG), s(sT0), s(sWAVE)))
    A("s_add_u32 %s, %s, %s" % (s(sOTG), s(sT0), s(sTG)))
    PX = Prog(A, "x")
    PX.early = load_x_and_stats(A, 96, "", 28)
    PX.post("xl1_0")
    A("s_lshl_b32 %s, %s, 8" % (s(sT0), s(sTEAM)))
    A("s_add_u32 %s, %s, %d" % (s(sT0), s(sT0), FLAGS))
    A("s_lshl_b32 %s, %s, 4" % (s(sT1), s(sMEM)))
    A("s_add_u32 %s, %s, %s" % (s(sMYFLAG), s(sT0), s(sT1)))
    A("s_lshl_b32 %s, %s, 2" % (s(sT2), s(sWAVE)))
    A("s_add_u32 %s, %s, %s" % (s(sMYFLAG), s(sMYFLAG), s(sT2)))
    A("s_lshl_b32 %s, %s, 2" % (s(sT3), s(sTG)))
    A("v_and_b32 v4, 15, v0")
    A("v_lshlrev_b32 v4, 2, v4")
    A("s_lshl_b32 %s, %s, 6" % (s(sT1), s(sWAVE)))
    A("s_add_u32 %s, %s, %s" % (s(sT1), s(sT0), s(sT1)))
    A("v_add_u32 v6, %s, v4" % s(sT1))
    A("v_accvgpr_write_b32 %s, v6" % a(aPA))
    A("v_and_b32 v4, 3, v0")
    A("v_lshlrev_b32 v5, 4, v4")
    A("s_add_u32 %s, %s, %s" % (s(sT1), s(sT1), s(sT3)))
    A("v_add_u32 v6, %s, v5" % s(sT1))
    A("v_accvgpr_write_b32 %s, v6" % a(aPB))
    A("v_and_b32 v4, 15, v0")
    A("v_mul_u32_u24 v4, %d, v4" % RED_PITCH)
    A("v_lshrrev_b32 v5, 4, v0")
    A("v_lshl_add_u32 v4, v5, 4, v4")
    A("s_mul_i32 %s, %s, %d" % (s(sT0), s(sWAVE), RED_WAVE))
    A("s_add_u32 %s, %s, %d" % (s(sT0), s(sT0), REGB))
    A("v_add_u32 %s, %s, v4" % (v(vRED_W), s(sT0)))
    A("v_lshrrev_b32 v4, 3, v0")
    A("s_lshl_b32 %s, %s, 3" % (s(sT0), s(sWAVE)))
    A("v_add_u32 v4, %s, v4" % s(sT0))
    A("v_and_b32 v5, 7, v0")
    A("v_min_u32 v5, 6, v5")
    A("v_mul_u32_u24 v6, %d, v4" % RED_PITCH)
    A("v_lshl_add_u32 v6, v5, 6, v6")
    A("v_add_u32 %s, %d, v6" % (v(vRED_R), REGB))
    A("s_mul_i32 %s, %s, %d" % (s(sT0), s(sOTG), 28 * KB))
    A("s_mul_i32 %s, %s, %d" % (s(sT1), s(sFG), 7 * KB))
    A("s_add_u32 %s, %s, %s" % (s(sT0), s(sT0), s(sT1)))
    A("v_lshlrev_b32 v6, 10, v5")
    A("v_lshl_add_u32 v6, v4, 4, v6")
    A("v_add_u32 %s, %s, v6" % (v(vXST), s(sT0)))
    A("s_lshl_b32 %s, %s, 5" % (s(sT0), s(sOTG)))
    A("v_add_u32 v6, %s, v4" % s(sT0))
    A("v_mul_u32_u24 v7, 896, v6")
    A("v_lshl_add_u32 v7, v5, 5, v7")
    A("s_mul_i32 %s, %s, 224" % (s(sT1), s(sFG)))
    A("v_add_u32 %s, %s, v7" % (v(vOUTO), s(sT1)))
    A("v_lshlrev_b32 v7, 5, v6")
    A("s_lshl_b32 %s, %s, 3" % (s(sT1), s(sFG)))
    A("v_add_u32 %s, %s, v7" % (v(vSTO), s(sT1)))
    A("v_and_b32 v4, 15, v0")
    A("v_lshlrev_b32 v4, 4, v4")
    A("v_lshrrev_b32 v5, 5, v0")
    A("v_lshl_add_u32 v4, v5, 8, v4")
    A("v_bfe_u32 v5, v0, 4, 1")
    A("v_lshl_add_u32 %s, v5, 14, v4" % v(vOST))
    stamp(A, "start")
    for c in range(2):
        A("buffer_load_dwordx4 %s, %s, %s, 0 offen offset:%d" % (v(vRES + 4 * c, 4), v(vOUTO), s(sX, 4), c * 16))
    for L in range(2):
        for ph in (phase1, phase2, phase3, phase4, phase5):
            ph(PX, L)
    if ENV("HST") != "1":
        dump_stamps(A)
    A("s_endpgm")
    nx = A.ninst
    B = Asm()
    B.label("Lhelper")
    PH = Prog(B, "h")
    hstamp(B, "start")
    gen_helper(PH)
    if ENV("HST") == "1":
        dump_stamps(B)
    B.label("Lmain_end")
    B("s_endpgm")
    EV["x"] = PX.ids
    EV["h"] = PH.ids
    sys.stderr.write("main: X %d instr (%d auto nops), helper %d, events %d/%d\n" % (nx, A.nops, B.ninst, PX.n, PH.n))
    return A.text() + B.text() + kernel_desc("main_kernel", 256, 128)


def generate():
    global STAMPS
    A = Asm()
    A.raw(HEADER.rstrip())
    A.raw("; @launch kernel=prep_kernel grid=(%d,1,1) block=(256,1,1) lds=33792" % PREP_WGS)
    A.raw("; @launch kernel=main_kernel grid=(256,1,1) block=(512,1,1) lds=%d" % LDS_TOTAL)
    A.raw('.amdgcn_target "amdgcn-amd-amdhsa--gfx950"')
    gen_prep(A)
    gen_main()
    if STAMPS is not None:
        STAMPS = []
    return A.text() + gen_main()


if __name__ == "__main__":
    out = sys.argv[1] if len(sys.argv) > 1 else "k4.s"
    if len(sys.argv) > 2 and sys.argv[2] == "stamps":
        STAMPS = []
    open(out, "w").write(generate())
    if STAMPS is not None:
        open(out + ".stamps", "w").write("\n".join(STAMPS))
    elif os.path.exists(out + ".stamps"):
        os.remove(out + ".stamps")
```

```python
import sys, struct, math, os
sys.path.insert(0, "tools")
from emit import Asm, v, a, s

KB = 1024
TILE = 29 * KB
WQKV = 0
WO = WQKV + 16 * 3 * TILE
WGU = WO + 448 * KB
WD = WGU + 16 * 7 * TILE
XF = WD + 1568 * KB + 16 * KB
XF_SZ = 64 * 28 * KB
ST = XF + XF_SZ
ST_SZ = 2048 * 32
KV = ST + ST_SZ
KV_SZ = 256 * 16 * KB
OB = KV + 2 * KV_SZ
OB_SZ = 128 * 16 * KB
HB = OB + 2 * OB_SZ
HB_SZ = 64 * 112 * KB
FLAGS = HB + 2 * HB_SZ
DBG = FLAGS + 8 * KB
WS_BYTES = 268435456

LDS_TOTAL = 160 * KB
REGB = 3 * TILE
VST = 5 * TILE
FL = VST + 512
RED_PITCH = 464
RED_WAVE = 32 * RED_PITCH
DH = 28
STAMPS = None
ENV = os.environ.get
OB_ST = 0 if ENV("REUSE") == "1" else OB_SZ
HB_ST = 0 if ENV("REUSE") == "1" else HB_SZ
NTSET = ENV("NT", "")
nt = lambda c: " nt" if c in NTSET else ""


def f32bits(x):
    return struct.unpack("<I", struct.pack("<f", x))[0]


HEADER = """; Kernarg layout for this problem (80 bytes, ptrs only, base s[0:1]):
"""


def kernel_desc(name, vgpr, accum, sgpr=102):
    return f""".section .rodata,"a"
.p2align 6
.amdhsa_kernel {name}
  .amdhsa_next_free_vgpr {vgpr}
  .amdhsa_next_free_sgpr {sgpr}
  .amdhsa_accum_offset {accum}
  .amdhsa_group_segment_fixed_size 0
  .amdhsa_kernarg_size 80
  .amdhsa_user_sgpr_count 2
  .amdhsa_user_sgpr_kernarg_segment_ptr 1
  .amdhsa_system_sgpr_workgroup_id_x 1
.end_amdhsa_kernel
.text
"""


def kernel_head(A, name):
    A.raw(".text")
    A.raw(".globl %s" % name)
    A.raw(".p2align 8")
    A.raw(".type %s,@function" % name)
    A.raw("%s:" % name)


def srd(A, d, lo, hi, nbytes):
    A("s_mov_b32 %s, %s" % (s(d), s(lo)))
    A("s_mov_b32 %s, %s" % (s(d + 1), s(hi)))
    A("s_mov_b32 %s, 0x%x" % (s(d + 2), nbytes))
    A("s_mov_b32 %s, 0x00020000" % s(d + 3))


PREP_WGS = 296 + 64


def gen_prep(A0):
    class W:
        def __call__(self, x):
            if x.startswith("buffer_store"):
                x += ENV("PS", " sc1")
            return A0(x)

        def __getattr__(self, n):
            return getattr(A0, n)
    A = W()
    kernel_head(A, "prep_kernel")
    A("s_cmp_ge_u32 s2, %d" % PREP_WGS)
    A("s_cbranch_scc1 Lprep_end")
    A("s_load_dwordx16 s[16:31], s[0:1], 0")
    A("s_load_dwordx4 s[32:35], s[0:1], 64")
    A("v_lshlrev_b32 v10, 4, v0")
    A("v_lshrrev_b32 v2, 6, v0")
    A("v_and_b32 v0, 63, v0")
    A("v_readfirstlane_b32 s36, v2")
    A("v_lshlrev_b32 v1, 4, v0")
    A("v_and_b32 v3, 31, v0")
    A("v_lshrrev_b32 v4, 5, v0")
    A("s_lshl_b32 s46, s36, 13")
    A("s_mul_i32 s47, s36, %d" % (7 * KB))
    A("s_waitcnt lgkmcnt(0)")
    srd(A, 4, 34, 35, WS_BYTES)
    A("s_cmp_lt_u32 s2, 112")
    A("s_cbranch_scc1 Lprep_gu")
    A("s_cmp_lt_u32 s2, 160")
    A("s_cbranch_scc1 Lprep_qkv")
    A("s_cmp_lt_u32 s2, 176")
    A("s_cbranch_scc1 Lprep_wo")
    A("s_cmp_lt_u32 s2, 232")
    A("s_cbranch_scc1 Lprep_wd")
    A("s_cmp_lt_u32 s2, 296")
    A("s_cbranch_scc1 Lprep_x")

    A("s_sub_u32 s43, s2, 296")
    if ENV("CODEWARM", "0") == "1":
        A("s_getpc_b64 s[48:49]")
        A.raw("Lpc1:")
        A("s_add_u32 s48, s48, main_kernel-Lpc1")
        A("s_addc_u32 s49, s49, 0")
        A("s_lshl_b32 s44, s43, 11")
        A("v_and_b32 v5, 15, v0")
        A("v_lshlrev_b32 v5, 7, v5")
        A("v_add_u32 v5, s44, v5")
        A("v_min_u32 v5, Lmain_end-main_kernel, v5")
        A("global_load_dword v6, v5, s[48:49]")
    if ENV("TLBW", "0") == "1":
        A("v_lshlrev_b32 v5, 14, v10")
        A("v_min_u32 v5, %d, v5" % FLAGS)
        A("buffer_load_dword v6, v5, s[4:7], 0 offen")
        srd(A, 8, 30, 31, 2048 * 896)
        A("v_min_u32 v5, %d, v5" % (2048 * 896 - 4))
        A("buffer_load_dword v7, v5, s[8:11], 0 offen")
    A("s_lshl_b32 s43, s43, 16")
    A("s_add_u32 s43, s43, %d" % KV)
    for i in range(4):
        A("v_mov_b32 %s, -1" % v(16 + i))
    for i in range(16):
        A("buffer_store_dwordx4 v[16:19], v10, s[4:7], s43 offen")
        A("s_add_u32 s43, s43, 4096")
    A("s_branch Lprep_end")

    A.label("Lprep_qkv")
    srd(A, 8, 18, 19, 448 * 1344 * 2)
    A("s_sub_u32 s43, s2, 112")
    A("s_and_b32 s44, s43, 3")
    A("s_bfe_u32 s37, s43, 0x20002")
    A("s_lshr_b32 s38, s43, 4")
    A("s_mul_i32 s39, s38, 896")
    A("s_mul_i32 s41, s37, 224")
    A("s_add_u32 s39, s39, s41")
    A("v_lshrrev_b32 v5, 4, v0")
    A("v_mul_u32_u24 v5, 2688, v5")
    A("v_and_b32 v6, 15, v0")
    A("v_lshl_add_u32 v5, v6, 4, v5")
    A("s_lshl_b32 s40, s44, 2")
    A("s_add_u32 s40, s40, s36")
    A("s_mul_i32 s40, s40, %d" % (28 * 2688))
    A("s_add_u32 s40, s40, s39")
    A("s_mov_b32 s41, s47")
    for i in range(7):
        A("s_mov_b32 m0, s41")
        A("buffer_load_dwordx4 v5, s[8:11], s40 offen lds")
        A("s_add_u32 s40, s40, %d" % (4 * 2688))
        A("s_add_u32 s41, s41, 1024")
    A("s_lshl_b32 s42, s37, 2")
    A("s_add_u32 s42, s42, s36")
    A("s_mul_i32 s42, s42, 3")
    A("s_add_u32 s42, s42, s38")
    A("s_mul_i32 s42, s42, %d" % TILE)
    A("s_add_u32 s42, s42, %d" % WQKV)
    A("s_mov_b32 s45, 1")
    A("s_mul_i32 s39, s36, 56")
    A("v_bfe_u32 v6, v0, 4, 1")
    A("v_lshlrev_b32 v7, 5, v6")
    A("s_branch Lprep_T")

    A.label("Lprep_gu")
    A("s_and_b32 s44, s2, 3")
    A("s_lshr_b32 s37, s2, 2")
    A("s_lshl_b32 s42, s37, 2")
    A("s_add_u32 s42, s42, s36")
    A("s_mul_i32 s42, s42, %d" % TILE)
    A("s_add_u32 s42, s42, %d" % WGU)
    A("s_lshl_b32 s37, s37, 7")
    A("s_lshl_b32 s38, s44, 2")
    A("s_add_u32 s38, s38, s36")
    A("s_mul_i32 s38, s38, %d" % (28 * 3584))
    A("s_add_u32 s37, s37, s38")
    A("v_lshrrev_b32 v7, 4, v0")
    A("v_mul_u32_u24 v7, 3584, v7")
    A("v_and_b32 v6, 7, v0")
    A("v_lshl_add_u32 v7, v6, 4, v7")
    A("v_add_u32 v7, s37, v7")
    A("v_and_b32 v6, 8, v0")
    A("v_cmp_eq_u32 vcc, 0, v6")
    A("v_mov_b32 v8, s26")
    A("v_mov_b32 v9, s27")
    A("v_mov_b32 v12, s24")
    A("v_mov_b32 v13, s25")
    A("v_cndmask_b32 v8, v8, v12, vcc")
    A("v_cndmask_b32 v9, v9, v13, vcc")
    A("v_add_co_u32 v8, vcc, v8, v7")
    A("v_addc_co_u32 v9, vcc, 0, v9, vcc")
    A("s_mov_b32 s48, %d" % (4 * 3584))
    A("s_mov_b32 s49, 0")
    A("s_mov_b32 s41, s47")
    for i in range(7):
        A("s_mov_b32 m0, s41")
        A("global_load_lds_dwordx4 v[8:9], off")
        A("v_lshl_add_u64 v[8:9], v[8:9], 0, s[48:49]")
        A("s_add_u32 s41, s41, 1024")
    A("s_mov_b32 s45, 2")
    A("s_lshl_b32 s39, s36, 5")
    A("v_bfe_u32 v6, v0, 4, 1")
    A("v_lshlrev_b32 v7, 7, v6")

    A.label("Lprep_T")
    A("v_bfe_u32 v6, v0, 2, 2")
    A("v_lshl_add_u32 v5, v4, 3, v6")
    A("v_lshlrev_b32 v5, 8, v5")
    A("v_add_u32 v5, v5, v7")
    A("v_and_b32 v6, 3, v0")
    A("v_lshl_add_u32 v5, v6, 3, v5")
    A("v_add_u32 v5, s39, v5")
    A("s_mul_i32 s41, s44, %d" % (7 * KB))
    A("s_add_u32 s41, s41, s42")
    A.wait_all_vm()
    A("s_barrier")
    for ss in range(7):
        for h in range(2):
            A("ds_read_b64_tr_b16 %s, v5 offset:%d" % (v(16 + 4 * ss + 2 * h, 2), ss * 4096 + h * 1024))
    A.wait_all_lg()
    A("s_cmp_lg_u32 s45, 1")
    A("s_cbranch_scc1 Lprep_z1")
    A("s_mov_b32 s48, 0xf0000000")
    A("s_mov_b32 s49, 0xf0000000")
    A("s_mov_b64 exec, s[48:49]")
    for i in range(28):
        A("v_mov_b32 %s, 0" % v(16 + i))
    A("s_mov_b64 exec, -1")
    A.label("Lprep_z1")
    for ss in range(7):
        if ss == 4:
            A("s_add_u32 s41, s41, 4096")
        A("buffer_store_dwordx4 %s, v1, s[4:7], s41 offen offset:%d" % (v(16 + 4 * ss, 4), (ss % 4) * KB))
    A("v_mov_b32 v8, 0")
    A("v_mov_b32 v9, 0")
    A("v_mov_b32 v10, 0x3f803f80")
    for i in range(28):
        A("v_dot2c_f32_bf16 %s, %s, v10" % (v(8 + (i & 1)), v(16 + i)))
    A("s_nop 3")
    A("v_add_f32 v44, v8, v9")
    A("v_mov_b32 v45, v44")
    A("v_permlane32_swap_b32 v44, v45")
    A("v_add_f32 v44, v44, v45")
    A("v_cvt_pk_bf16_f32 v45, v44, v44")
    A("v_lshlrev_b32 v46, 16, v45")
    A("v_sub_f32 v47, v44, v46")
    A("v_cvt_pk_bf16_f32 v48, v47, v47")
    A("v_lshlrev_b32 v49, 16, v48")
    A("v_sub_f32 v50, v47, v49")
    A("v_cvt_pk_bf16_f32 v51, v50, v50")
    A("v_and_b32 v45, 0xffff, v45")
    A("v_or_b32 v52, v45, v49")
    A("v_and_b32 v53, 0xffff, v51")
    A("v_lshlrev_b32 v6, 4, v3")
    A("s_lshr_b32 s41, s44, 1")
    A("s_lshl_b32 s41, s41, 9")
    A("s_and_b32 s40, s44, 1")
    A("s_lshl_b32 s40, s40, 3")
    A("s_add_u32 s41, s41, s40")
    A("s_add_u32 s41, s41, s42")
    A("s_add_u32 s41, s41, %d" % (28 * KB))
    A("buffer_store_dwordx2 v[52:53], v6, s[4:7], s41 offen")
    A("s_branch Lprep_end")

    A.label("Lprep_wo")
    srd(A, 8, 20, 21, 448 * 448 * 2)
    A("s_sub_u32 s37, s2, 160")
    A("s_lshl_b32 s42, s37, 2")
    A("s_add_u32 s42, s42, s36")
    A("s_and_b32 s40, s42, 15")
    A("s_mul_i32 s40, s40, %d" % (28 * 896))
    A("s_lshr_b32 s37, s37, 2")
    A("s_mul_i32 s42, s42, %d" % (7 * KB))
    A("s_add_u32 s42, s42, %d" % WO)
    A("s_mov_b32 s45, 3")
    A("s_branch Lprep_F")

    A.label("Lprep_wd")
    srd(A, 8, 28, 29, 1792 * 448 * 2)
    A("s_sub_u32 s38, s2, 176")
    A("s_mul_hi_u32 s37, s38, 0x12492493")
    A("s_mul_i32 s40, s37, 14")
    A("s_sub_u32 s40, s38, s40")
    A("s_mul_i32 s42, s36, 14")
    A("s_add_u32 s40, s40, s42")
    A("s_mul_i32 s40, s40, %d" % (32 * 896))
    A("s_lshl_b32 s42, s38, 2")
    A("s_add_u32 s42, s42, s36")
    A("s_mul_i32 s42, s42, %d" % (7 * KB))
    A("s_add_u32 s42, s42, %d" % WD)
    A("s_mov_b32 s45, 4")

    A.label("Lprep_F")
    A("s_mul_i32 s37, s37, 224")
    A("s_add_u32 s40, s40, s37")
    A("v_lshrrev_b32 v7, 4, v0")
    A("v_mul_u32_u24 v7, 896, v7")
    A("v_and_b32 v6, 15, v0")
    A("v_lshl_add_u32 v7, v6, 4, v7")
    A("s_mov_b32 s41, s46")
    for i in range(8):
        A("s_mov_b32 m0, s41")
        A("buffer_load_dwordx4 v7, s[8:11], s40 offen lds")
        A("s_add_u32 s40, s40, %d" % (4 * 896))
        A("s_add_u32 s41, s41, 1024")
    A("v_lshlrev_b32 v5, 4, v4")
    A("v_bfe_u32 v6, v0, 4, 1")
    A("v_lshl_add_u32 v5, v6, 2, v5")
    A("v_bfe_u32 v6, v0, 2, 2")
    A("v_add_u32 v5, v5, v6")
    A("v_lshlrev_b32 v5, 8, v5")
    A("v_and_b32 v6, 3, v0")
    A("v_lshl_add_u32 v5, v6, 3, v5")
    A("v_add_u32 v5, s46, v5")
    A.wait_all_vm()
    for ft in range(7):
        for h in range(2):
            A("ds_read_b64_tr_b16 %s, v5 offset:%d" % (v(16 + 4 * ft + 2 * h, 2), h * 2048 + ft * 32))
    A.wait_all_lg()
    A("s_cmp_lg_u32 s45, 3")
    A("s_cbranch_scc1 Lprep_z2")
    A("s_mov_b32 s48, 0")
    A("s_mov_b32 s49, 0xffff0000")
    A("s_mov_b64 exec, s[48:49]")
    for ft in range(7):
        A("v_mov_b32 %s, 0" % v(16 + 4 * ft + 2))
        A("v_mov_b32 %s, 0" % v(16 + 4 * ft + 3))
    A("s_mov_b64 exec, -1")
    A.label("Lprep_z2")
    for ft in range(7):
        if ft == 4:
            A("s_add_u32 s42, s42, 4096")
        A("buffer_store_dwordx4 %s, v1, s[4:7], s42 offen offset:%d" % (v(16 + 4 * ft, 4), (ft % 4) * KB))
    A("s_branch Lprep_end")

    A.label("Lprep_x")
    srd(A, 8, 16, 17, 2048 * 896)
    A("s_sub_u32 s43, s2, 232")
    A("v_mul_u32_u24 v7, 896, v3")
    A("v_lshlrev_b32 v8, 4, v4")
    A("v_add_u32 v7, v7, v8")
    A("s_mul_i32 s40, s43, %d" % (32 * 896))
    A("s_mul_i32 s41, s36, 224")
    A("s_add_u32 s40, s40, s41")
    for ss in range(7):
        A("buffer_load_dwordx4 %s, v7, s[8:11], s40 offen offset:%d" % (v(16 + 4 * ss, 4), ss * 32))
    A("v_and_b32 v8, 31, v0")
    A("v_lshlrev_b32 v8, 2, v8")
    A("s_lshl_b32 s41, s43, 7")
    A("s_add_u32 s41, s41, %d" % FLAGS)
    A("v_mov_b32 v9, 0")
    A("buffer_store_dword v9, v8, s[4:7], s41 offen")
    A("s_mul_i32 s42, s43, %d" % (28 * KB))
    A("s_add_u32 s42, s42, s47")
    A("s_add_u32 s42, s42, %d" % XF)
    A.wait_all_vm()
    for ss in range(7):
        if ss == 4:
            A("s_add_u32 s42, s42, 4096")
        A("buffer_store_dwordx4 %s, v1, s[4:7], s42 offen offset:%d" % (v(16 + 4 * ss, 4), (ss % 4) * KB))
    A("v_mov_b32 v10, 0")
    A("v_mov_b32 v11, 0")
    A("v_mov_b32 v9, 0x3f803f80")
    for i in range(28):
        A("v_dot2c_f32_bf16 v10, %s, v9" % v(16 + i))
        A("v_dot2c_f32_bf16 v11, %s, %s" % (v(16 + i), v(16 + i)))
    A("s_nop 3")
    A("v_mov_b32 v12, v10")
    A("v_mov_b32 v13, v11")
    A("v_permlane32_swap_b32 v10, v12")
    A("v_permlane32_swap_b32 v11, v13")
    A("v_add_f32 v10, v10, v12")
    A("v_add_f32 v11, v11, v13")
    A("v_lshlrev_b32 v8, 5, v3")
    A("s_lshl_b32 s41, s43, 10")
    A("s_lshl_b32 s40, s36, 3")
    A("s_add_u32 s41, s41, s40")
    A("s_add_u32 s41, s41, %d" % ST)
    A("buffer_store_dwordx2 v[10:11], v8, s[4:7], s41 offen")
    A.label("Lprep_end")
    A("s_endpgm")
    A.raw(kernel_desc("prep_kernel", 64, 64))


sWS, sX, sOUT, sDBG = 4, 8, 12, 36
sTEAM, sMEM, sWAVE, sTG, sFG = 16, 17, 18, 19, 20
sT0, sT1, sT2, sT3 = 21, 22, 23, 24
sCNT = 25
sGTG, sOTG, sMYFLAG, sHW = 26, 27, 28, 29
sC0, sC1 = 30, 31
sEX = 40
sHALF, sFLW, sFLP, sPURE = 42, 43, 44, 45
vLANE, vL16, vL16b, vL16c = 0, 1, 2, 3
vT = 4
vQ = 8
vRES = 108
vF = 116
vRED_R, vRED_W, vXST, vOUTO, vSTO, vFV, vFA, vOST = 120, 121, 122, 123, 124, 125, 126, 127
aPA, aPB = 124, 125
aAUG = 112

_lbl = [0]
MF32 = "v_mfma_f32_32x32x16_bf16"
MF16 = "v_mfma_f32_16x16x32_bf16"
EV = {"x": {}, "h": {}}


def newlbl(p):
    _lbl[0] += 1
    return "L%s%d" % (p, _lbl[0])


def hstamp(A, name):
    if STAMPS is not None and ENV("HST") == "1":
        _stamp(A, name)


def stamp(A, name):
    if STAMPS is not None and ENV("HST") != "1":
        _stamp(A, name)


def _stamp(A, name):
    i = len(STAMPS)
    assert i < 42
    STAMPS.append(name)
    A("s_memtime s[50:51]" if ENV("CYC") == "1" else "s_memrealtime s[50:51]")
    A.wait_all_lg()
    A("s_mov_b32 %s, s50" % s(60 + i))


def dump_stamps(A):
    if STAMPS is None:
        return
    A("s_lshl_b32 %s, s2, 2" % s(sT0))
    A("s_add_u32 %s, %s, %s" % (s(sT0), s(sT0), s(sHW)))
    A("s_lshl_b32 %s, %s, 8" % (s(sT0), s(sT0)))
    A("s_add_u32 %s, %s, %d" % (s(sT0), s(sT0), DBG))
    A("v_mov_b32 %s, 0" % v(vT + 1))
    A("s_mov_b64 exec, 1")
    for i in range(len(STAMPS)):
        A("v_mov_b32 %s, %s" % (v(vT), s(60 + i)))
        A("buffer_store_dword %s, %s, %s, %s offen offset:%d" % (v(vT), v(vT + 1), s(sWS, 4), s(sT0), i * 4))
        A("s_nop 1")
    A("s_mov_b64 exec, -1")


def ldsaddr(off):
    if off < 65536:
        return v(vL16), off
    if off < 131072:
        return v(vL16b), off - 65536
    return v(vL16c), off - 131072


class Prog:
    def __init__(self, A, role):
        self.A = A
        self.role = role
        self.n = 0
        self.ids = {}

    def post(self, name):
        A = self.A
        self.n += 1
        self.ids[name] = self.n
        A("v_mov_b32 %s, %d" % (v(vFV), self.n))
        A("ds_write_b32 %s, %s" % (v(vFA), v(vFV)))

    def _read(self, who, own):
        A = self.A
        if own:
            A("v_mov_b32 %s, %s" % (v(vF), s(sFLP)))
            return A("ds_read_b32 %s, %s" % (v(vF), v(vF)))
        A("v_mov_b32 %s, %d" % (v(vF), FL + (0 if who == "x" else 16)))
        return A("ds_read_b128 %s, %s" % (v(vF, 4), v(vF)))

    def _test(self, who, name, own):
        A = self.A
        ev = EV[who].get(name, 1)
        if not own:
            A("v_min3_u32 %s, %s, %s, %s" % (v(vF), v(vF), v(vF + 1), v(vF + 2)))
            A("v_min_u32 %s, %s, %s" % (v(vF), v(vF), v(vF + 3)))
        A("v_cmp_gt_u32 vcc, %d, %s" % (ev, v(vF)))
        A("s_nop 1")

    def check_begin(self, who, own=False):
        return self._read(who, own)

    def check_end(self, tok, who, name, own=False):
        A = self.A
        A.wait(tok)
        self._test(who, name, own)
        L = newlbl("c")
        A("s_cbranch_vccz %sd" % L)
        st = A.slow_begin()
        A("s_mov_b32 %s, 2000000" % s(sCNT))
        A.label(L)
        A("s_sleep 1")
        self._read(who, own)
        A.wait_all_lg()
        self._test(who, name, own)
        A("s_cbranch_vccz %sd" % L)
        A("s_sub_u32 %s, %s, 1" % (s(sCNT), s(sCNT)))
        A("s_cmp_lg_u32 %s, 0" % s(sCNT))
        A("s_cbranch_scc1 %s" % L)
        A.slow_end(st, L + "d")

    def wait(self, who, name, own=False):
        self.check_end(self.check_begin(who, own), who, name, own)


def poll(A, voff, val):
    L = newlbl("poll")
    A("s_mov_b32 %s, 200000" % s(sCNT))
    A.label(L)
    A("buffer_load_dword %s, %s, %s, 0 offen sc1" % (v(vT), v(voff), s(sWS, 4)))
    A.wait_all_vm()
    A("v_cmp_gt_u32 vcc, %d, %s" % (val, v(vT)))
    A("s_nop 1")
    A("s_cbranch_vccz %sd" % L)
    A("s_sub_u32 %s, %s, 1" % (s(sCNT), s(sCNT)))
    A("s_cmp_lg_u32 %s, 0" % s(sCNT))
    A("s_cbranch_scc1 %s" % L)
    A.label(L + "d")


def polla(A, areg, val):
    A("v_accvgpr_read_b32 %s, %s" % (v(vT + 3), a(areg)))
    poll(A, vT + 3, val)


def two_way(A, lines):
    L = newlbl("tw")
    A("s_cmp_lg_u32 %s, 0" % s(sPURE))
    A("s_cbranch_scc1 %sp" % L)
    win = list(A.win)
    vm0 = A.vm
    for ln in lines:
        A(ln + " sc1")
    A("s_branch %sd" % L)
    A.out.append(L + "p:")
    A.win = win
    A.vm = vm0
    toks = [A(ln) for ln in lines]
    A.out.append(L + "d:")
    return toks


def signal(A, val, toks=None):
    A("v_mov_b32 %s, %d" % (v(vT), val))
    A("v_mov_b32 %s, 0" % v(vT + 1))
    if toks is None:
        A.wait_all_vm()
    else:
        A.wait(*toks)
    A("s_mov_b64 exec, 1")
    two_way(A, ["buffer_store_dword %s, %s, %s, %s offen" % (v(vT), v(vT + 1), s(sWS, 4), s(sMYFLAG))])
    A("s_mov_b64 exec, -1")


def load_frags(A, dsts, sbase, sfx="", voff=None):
    toks = []
    for i, d in enumerate(dsts):
        toks.append(A("buffer_load_dwordx4 %s, %s, %s, %s offen offset:%d%s" % (d, voff or v(vL16), s(sWS, 4), s(sbase), (i % 4) * KB, sfx)))
        if i % 4 == 3 and i + 1 < len(dsts):
            A("s_add_u32 %s, %s, 4096" % (s(sbase), s(sbase)))
    return toks


def ln_stats_list(vs, va_, vsd, vaug):
    o = []
    o.append("v_add_f32 %s, %s, %s" % (v(vs), v(vs), v(vs + 2)))
    o.append("v_add_f32 %s, %s, %s" % (v(vs + 4), v(vs + 4), v(vs + 6)))
    o.append("v_add_f32 %s, %s, %s" % (v(vs + 1), v(vs + 1), v(vs + 3)))
    o.append("v_add_f32 %s, %s, %s" % (v(vs + 5), v(vs + 5), v(vs + 7)))
    o.append("v_add_f32 %s, %s, %s" % (v(vs), v(vs), v(vs + 4)))
    o.append("v_add_f32 %s, %s, %s" % (v(vs + 1), v(vs + 1), v(vs + 5)))
    o.append("v_mul_f32 %s, 0x%x, %s" % (v(vs), f32bits(1.0 / 448), v(vs)))
    o.append("v_mul_f32 %s, 0x%x, %s" % (v(vs + 1), f32bits(1.0 / 448), v(vs + 1)))
    o.append("v_fma_f32 %s, -%s, %s, %s" % (v(vs + 1), v(vs), v(vs), v(vs + 1)))
    o.append("v_max_f32 %s, 0, %s" % (v(vs + 1), v(vs + 1)))

    def rnd(d, x):
        o.append("v_cvt_pk_bf16_f32 %s, %s, %s" % (v(d), v(x), v(x)))
        o.append("v_lshlrev_b32 %s, 16, %s" % (v(d), v(d)))

    rnd(vs + 1, vs + 1)
    o.append("v_add_f32 %s, 0x%x, %s" % (v(vs + 1), f32bits(1e-5), v(vs + 1)))
    rnd(vs + 1, vs + 1)
    o.append("v_sqrt_f32 %s, %s" % (v(vs + 1), v(vs + 1)))
    o.append("v_sub_f32 %s, 0, %s" % (v(vs), v(vs)))
    rnd(vsd, vs + 1)
    o.append("v_rcp_f32 %s, %s" % (v(va_), v(vsd)))
    o.append("v_cvt_pk_bf16_f32 %s, %s, %s" % (v(vs + 2), v(vs), v(vs)))
    o.append("v_and_b32 %s, 0xffff, %s" % (v(vs + 3), v(vs + 2)))
    o.append("v_accvgpr_write_b32 %s, %s" % (a(aAUG), v(vs + 2)))
    o.append("v_accvgpr_write_b32 %s, %s" % (a(aAUG + 1), v(vs + 3)))
    o.append("v_accvgpr_write_b32 %s, %s" % (a(aAUG + 2), v(vs + 2)))
    o.append("v_accvgpr_write_b32 %s, %s" % (a(aAUG + 3), v(vs + 3)))
    return o


def load_x_and_stats(A, vs, sfx=" sc1", nfirst=28):
    sB = 47
    A("s_mul_i32 %s, %s, %d" % (s(sB), s(sGTG), 28 * KB))
    A("s_add_u32 %s, %s, %d" % (s(sB), s(sB), XF))
    A("s_lshl_b32 %s, %s, 10" % (s(sT2), s(sGTG)))
    A("s_add_u32 %s, %s, %d" % (s(sT2), s(sT2), ST))
    A("v_and_b32 %s, 31, %s" % (v(vT), v(vLANE)))
    A("v_lshlrev_b32 %s, 5, %s" % (v(vT), v(vT)))
    xt = {}

    def one(i):
        xt[i] = A("buffer_load_dwordx4 %s, %s, %s, %s offen offset:%d%s" % (a(4 * i, 4), v(vL16), s(sWS, 4), s(sB), (i % 4) * KB, sfx))
        if i % 4 == 3 and i < 27:
            A("s_add_u32 %s, %s, 4096" % (s(sB), s(sB)))

    for i in range(min(6, nfirst)):
        one(i)
    st = [A("buffer_load_dwordx4 %s, %s, %s, %s offen%s" % (v(vs, 4), v(vT), s(sWS, 4), s(sT2), sfx)),
          A("buffer_load_dwordx4 %s, %s, %s, %s offen offset:16%s" % (v(vs + 4, 4), v(vT), s(sWS, 4), s(sT2), sfx))]
    for i in range(6, nfirst):
        one(i)
    rest = [(lambda i=i: one(i)) for i in range(nfirst, 28)]
    return xt, st, rest


class Fill:
    def __init__(self):
        self.q = []
        self.done = 0

    def add(self, items):
        self.q.extend(items)
        return self.done + len(self.q)

    def emit(self, A, slots):
        while self.q and slots > 0:
            it = self.q.pop(0)
            self.done += 1
            if callable(it):
                it(A)
                slots -= 1
            else:
                A(it)
                slots -= 2 if it.startswith(("v_exp", "v_rcp", "v_sqrt", "v_rsq")) else 1

    def until(self, A, mark):
        while self.done < mark:
            self.emit(A, 1)

    def flush(self, A):
        self.emit(A, 1 << 30)


class Op:
    __slots__ = ("lds", "emit", "pre", "before", "after", "slots")

    def __init__(self, lds, emit, slots=4):
        self.lds = lds
        self.emit = emit
        self.pre = []
        self.before = []
        self.after = []
        self.slots = slots


def mkring(base, n, extra=True):
    r = [v(base + 4 * i, 4) for i in range(n)]
    if extra:
        r += [a(116 + 4 * i, 4) for i in range(2)]
    return r


def run_stream(A, ops, ring, depth, fill, addr=None):
    rd = {}
    nring = len(ring)
    assert depth < nring

    def issue(i):
        for f in ops[i].pre:
            f()
        if addr is None:
            r, o = ldsaddr(ops[i].lds)
        else:
            r, o = addr(ops[i].lds)
        rd[i] = A("ds_read_b128 %s, %s offset:%d" % (ring[i % nring], r, o))

    for i in range(min(depth, len(ops))):
        issue(i)
    for i, op in enumerate(ops):
        for f in op.before:
            f()
        A.wait(rd[i])
        op.emit(ring[i % nring])
        if i + depth < len(ops):
            issue(i + depth)
        for f in op.after:
            f()
        if fill:
            fill.emit(A, op.slots)


def gate(P, ops, idx, depth, who, name, own=False, lead=8):
    box = {}
    b = idx - depth - lead
    if b < 0:
        ops[idx].pre.append(lambda: P.wait(who, name, own))
        return
    ops[b].after.append(lambda: box.__setitem__("t", P.check_begin(who, own)))
    ops[idx].pre.append(lambda: P.check_end(box["t"], who, name, own))


QSLOT = [(0, 1, 2), (2, 0, 1)]
GSLOT = {0: 0, 1: 1, 2: 2, 3: 3, 4: 4, 5: 0, 6: 1}
DSLOT = {j: (2 + j) % 5 for j in range(14)}
NX5 = 9
REG2 = 1 * TILE


def mf32(A, acc, first, swap, xop):
    def f(w):
        d = v(acc, 16)
        c = "0" if first else d
        if swap:
            A("%s %s, %s, %s, %s" % (MF32, d, xop, w, c))
        else:
            A("%s %s, %s, %s, %s" % (MF32, d, w, xop, c))
    return f


def phase1(P, L):
    A = P.A
    A.comment("================ P1 layer %d" % L)
    if L > 0:
        polla(A, aPA, 5 * L)
    stamp(A, "P1.polled")
    vS, vA_, vSD, vAUG = 96, 104, 105, 100
    accQ, accK, accV = 16, 32, 48
    RING, DEPTH = mkring(64, 4), 5
    VS = 80
    if L == 0:
        xt, stt, rest = P.early
    else:
        xt, stt, rest = load_x_and_stats(A, vS, " sc1", int(ENV("NF", "14")))
        if not rest:
            P.post("xl1_%d" % L)
    if L > 0:
        P.wait("x", "redfree5_%d" % (L - 1))
    fill = Fill()
    xop = lambda st_: a(4 * st_, 4)
    qs = QSLOT[L]
    ops = []
    for st_ in range(29):
        o1 = Op(qs[1] * TILE + st_ * KB, mf32(A, accK, st_ == 0, False, xop(st_)))
        if st_ < 28:
            o1.before.append(lambda st_=st_: A.wait(xt[st_]))
        ops.append(o1)
        ops.append(Op(qs[2] * TILE + st_ * KB, mf32(A, accV, st_ == 0, True, xop(st_))))
    nkv = len(ops)
    for st_ in range(29):
        ops.append(Op(qs[0] * TILE + st_ * KB, mf32(A, accQ, st_ == 0, False, xop(st_)), slots=5))
    for k, f in enumerate(rest):
        ops[k].after.append(f)
    if rest:
        ops[len(rest) - 1].after.append(lambda: P.post("xl1_%d" % L))
    if L == 0:
        for qq in range(3):
            gate(P, ops, 16 * qq, DEPTH, "h", "kvp%d" % qq, lead=3)
        gate(P, ops, 48, DEPTH, "h", "kv_w0", lead=3)
    else:
        gate(P, ops, 0, DEPTH, "h", "kv_w%d" % L)
    gate(P, ops, nkv, DEPTH, "h", "q_w%d" % L, lead=3 if L == 0 else 8)
    avt = []
    marks = {}

    def stats_hook():
        A.wait(*stt)
        lst = ln_stats_list(vS, vA_, vSD, vAUG)
        lst += ["v_and_b32 %s, 31, %s" % (v(vT), v(vLANE)),
                "v_lshlrev_b32 %s, 2, %s" % (v(vT), v(vT)),
                "s_lshl_b32 %s, %s, 7" % (s(sT2), s(sWAVE)),
                "s_add_u32 %s, %s, %d" % (s(sT2), s(sT2), VST),
                "v_add_u32 %s, %s, %s" % (v(vT), s(sT2), v(vT)),
                "ds_write_b32 %s, %s" % (v(vT), v(vA_)),
                "v_lshrrev_b32 %s, 5, %s" % (v(vT + 1), v(vLANE)),
                "v_lshlrev_b32 %s, 4, %s" % (v(vT + 1), v(vT + 1)),
                "v_add_u32 %s, %s, %s" % (v(vT + 1), s(sT2), v(vT + 1))]
        for q in range(4):
            lst.append(lambda A, q=q: avt.append(A("ds_read_b128 %s, %s offset:%d" % (v(VS + 4 * q, 4), v(vT + 1), q * 32))))
        lst += ["s_lshl_b32 %s, %s, 4" % (s(sT0), s(sTEAM)),
                "s_add_u32 %s, %s, %s" % (s(sT0), s(sT0), s(sMEM)),
                "s_lshl_b32 %s, %s, 2" % (s(sT0), s(sT0)),
                "s_add_u32 %s, %s, %s" % (s(sT0), s(sT0), s(sWAVE)),
                "s_lshl_b32 %s, %s, 12" % (s(sT0), s(sT0)),
                "s_add_u32 %s, %s, %d" % (s(sT3), s(sT0), KV + L * KV_SZ),
                "s_lshl_b32 %s, %s, 12" % (s(sT1), s(sWAVE)),
                "v_add_u32 %s, %s, %s" % (v(vT + 2), s(sT1), v(vL16b)),
                "v_mov_b32 %s, -2" % v(vT + 3)]
        marks["st"] = fill.add(lst)

    ops[2 * 12].before.append(stats_hook)
    ops[2 * 27].before.append(lambda: fill.until(A, marks["st"]))
    vK, vV = 8, accK
    ep = []
    for r in range(16):
        ep.append("v_mul_f32 %s, %s, %s" % (v(accK + r), v(accK + r), v(vA_)))
    for i in range(8):
        ep.append("v_cvt_pk_bf16_f32 %s, %s, %s" % (v(vK + i), v(accK + 2 * i), v(accK + 2 * i + 1)))
    for i in range(8):
        ep.append("v_min_u32 %s, %s, %s" % (v(vK + i), v(vK + i), v(vT + 3)))
    for i in range(2):
        ep.append("buffer_store_dwordx4 %s, %s, %s, %s offen offset:%d sc1" % (v(vK + 4 * i, 4), v(vL16), s(sWS, 4), s(sT3), i * KB))
    ep.append(lambda A: A.wait(*avt))
    for r in range(16):
        ep.append("v_mul_f32 %s, %s, %s" % (v(accV + r), v(accV + r), v(VS + r)))
    for i in range(8):
        ep.append("v_cvt_pk_bf16_f32 %s, %s, %s" % (v(vV + i), v(accV + 2 * i), v(accV + 2 * i + 1)))
    for i in range(8):
        ep.append("v_min_u32 %s, %s, %s" % (v(vV + i), v(vV + i), v(vT + 3)))

    def ones(A):
        A("s_mov_b32 %s, 0x10000000" % s(sEX))
        A("s_mov_b32 %s, 0x10000000" % s(sEX + 1))
        A("s_mov_b64 exec, %s" % s(sEX, 2))
        for i in range(8):
            A("v_mov_b32 %s, 0x3f803f80" % v(vV + i))
        A("s_mov_b64 exec, -1")

    ep.append(ones)
    for i in range(2):
        ep.append("buffer_store_dwordx4 %s, %s, %s, %s offen offset:%d sc1" % (v(vV + 4 * i, 4), v(vL16), s(sWS, 4), s(sT3), (2 + i) * KB))
    for i in range(2):
        ep.append("ds_write_b128 %s, %s offset:%d" % (v(vT + 2), v(vK + 4 * i, 4), REGB - 65536 + 8 * 4096 + i * KB))
    for i in range(2):
        ep.append("ds_write_b128 %s, %s offset:%d" % (v(vT + 2), v(vV + 4 * i, 4), REGB - 65536 + 8 * 4096 + (2 + i) * KB))
    ops[nkv + 1].after.append(lambda: fill.add(ep))
    if STAMPS is not None:
        ops[nkv].before.append(lambda: stamp(A, "P1.kv"))
    run_stream(A, ops, RING, DEPTH, fill)
    fill.flush(A)
    P.post("qfree%d" % L)
    stamp(A, "P1.end")
    P.accQ, P.vA = accQ, vA_


def phase2(P, L):
    A = P.A
    A.comment("================ P2 layer %d" % L)
    accQ, vA_ = P.accQ, P.vA
    NB = 64
    SA, SB_, SC_, SD_ = 32, 48, 64, 80
    KBUF = 96
    accO = 16
    A("s_lshr_b32 %s, %s, 1" % (s(sT0), s(sWAVE)))
    A("s_add_u32 %s, %s, %s" % (s(sT0), s(sT0), s(sTEAM)))
    A("s_lshl_b32 %s, %s, 1" % (s(sT1), s(sWAVE)))
    A("s_and_b32 %s, %s, 3" % (s(sT1), s(sT1)))
    A("s_max_u32 %s, %s, 2" % (s(sT2), s(sT0)))
    A("s_sub_u32 %s, %s, 2" % (s(sT2), s(sT2)))
    A("s_lshl_b32 %s, %s, 4" % (s(sT2), s(sT2)))
    A("s_add_u32 %s, %s, %s" % (s(sT2), s(sT2), s(sMEM)))
    A("s_lshl_b32 %s, %s, 2" % (s(sT2), s(sT2)))
    A("s_add_u32 %s, %s, %s" % (s(sT2), s(sT2), s(sT1)))
    A("s_lshl_b32 %s, %s, 12" % (s(sT2), s(sT2)))
    A("s_add_u32 %s, %s, %d" % (s(sT2), s(sT2), KV + L * KV_SZ))
    A("s_add_u32 %s, %s, 4096" % (s(sT3), s(sT2)))
    Lf, Lj, Lr = newlbl("nofill"), newlbl("nbjoin"), newlbl("retry")

    def nb_loads():
        for i in range(8):
            A("buffer_load_dwordx4 %s, %s, %s, %s offen offset:%d sc1" % (v(NB + 4 * i, 4), v(vL16), s(sWS, 4), s(sT2 + i // 4), (i % 4) * KB))

    NWO = int(ENV("NWO", "24"))
    A("s_lshl_b32 %s, %s, 2" % (s(sC1), s(sFG)))
    A("s_add_u32 %s, %s, %s" % (s(sC1), s(sC1), s(sWAVE)))
    A("s_mul_i32 %s, %s, %d" % (s(sC1), s(sC1), 28 * KB))
    A("s_add_u32 %s, %s, %d" % (s(sC1), s(sC1), WO))
    P.wo = load_frags(A, [a(4 * i, 4) for i in range(NWO)], sC1, nt("o"))
    if NWO and NWO < 28:
        A("s_add_u32 %s, %s, 4096" % (s(sC1), s(sC1)))
    A("s_cmp_lt_u32 %s, 2" % s(sT0))
    Ls = newlbl("skip1")
    A("s_cbranch_scc1 %s" % Ls)
    nb_loads()
    A.label(Ls)
    P.wo += load_frags(A, [a(4 * i, 4) for i in range(NWO, 28)], sC1, nt("o"))
    for r in range(16):
        A("v_mul_f32 %s, %s, %s" % (v(accQ + r), v(accQ + r), v(vA_)))
    A("s_mov_b32 %s, 0" % s(sEX))
    A("s_mov_b32 %s, -1" % s(sEX + 1))
    A("s_mov_b64 exec, %s" % s(sEX, 2))
    A("v_mov_b32 %s, 1.0" % v(accQ + 12))
    A("s_mov_b64 exec, -1")
    A.wait_all_lg()
    if L == 0:
        A("v_and_b32 %s, 15, %s" % (v(vT + 3), v(vLANE)))
        A("v_lshlrev_b32 %s, 2, %s" % (v(vT + 3), v(vT + 3)))
        A("s_lshl_b32 %s, %s, 7" % (s(sC0), s(sTEAM)))
        A("s_add_u32 %s, %s, %d" % (s(sC0), s(sC0), FLAGS + 4096))
        A("v_add_u32 %s, %s, %s" % (v(vT + 3), s(sC0), v(vT + 3)))
        poll(A, vT + 3, 1)
        A("v_cmp_ne_u32 vcc, %s, %s" % (s(sPURE), v(vT)))
        A("s_nop 1")
        A("s_cmp_eq_u64 vcc, 0")
        A("s_cselect_b32 %s, 1, 0" % s(sPURE))
        if ENV("FORCE_IMPURE") == "1":
            A("s_mov_b32 %s, 0" % s(sPURE))
    vm_mark = A.vm
    A("s_cmp_ge_u32 %s, 2" % s(sT0))
    A("s_cbranch_scc1 %s" % Lf)
    A("s_waitcnt vmcnt(%d)" % (28 - NWO))
    for i in range(32):
        A("v_mov_b32 %s, 0" % v(NB + i))
    A("s_mov_b32 %s, 0" % s(sEX))
    A("s_mov_b32 %s, -1" % s(sEX + 1))
    A("s_mov_b64 exec, %s" % s(sEX, 2))
    A("v_mov_b32 %s, 0xce6e" % v(NB + 4 + 2))
    A("v_mov_b32 %s, 0xce6e" % v(NB + 16 + 4 + 2))
    A("s_mov_b64 exec, -1")
    A("s_branch %s" % Lj)
    A.label(Lf)
    A("s_mov_b32 %s, 200000" % s(sCNT))
    A("s_waitcnt vmcnt(%d)" % (28 - NWO))
    A.label(Lr)
    A("v_max3_u32 %s, %s, %s, %s" % (v(vT), v(NB), v(NB + 1), v(NB + 2)))
    A("v_max3_u32 %s, %s, %s, %s" % (v(vT + 1), v(NB + 3), v(NB + 4), v(NB + 5)))
    for i in range(6, 32, 4):
        A("v_max3_u32 %s, %s, %s, %s" % (v(vT), v(vT), v(NB + i), v(NB + i + 1)))
        if i + 3 < 32:
            A("v_max3_u32 %s, %s, %s, %s" % (v(vT + 1), v(vT + 1), v(NB + i + 2), v(NB + i + 3)))
    A("v_max_u32 %s, %s, %s" % (v(vT), v(vT), v(vT + 1)))
    A("v_cmp_eq_u32 vcc, -1, %s" % v(vT))
    A("s_nop 1")
    A("s_cbranch_vccz %s" % Lj)
    A("s_sub_u32 %s, %s, 1" % (s(sCNT), s(sCNT)))
    A("s_cmp_eq_u32 %s, 0" % s(sCNT))
    A("s_cbranch_scc1 %s" % Lj)
    nb_loads()
    A("s_waitcnt vmcnt(0)")
    A("s_branch %s" % Lr)
    A.label(Lj)
    A.vm = vm_mark
    A("s_lshl_b32 %s, %s, 13" % (s(sT1), s(sWAVE)))
    A("v_add_u32 %s, %s, %s" % (v(vT + 2), s(sT1), v(vL16b)))
    for i in range(8):
        A("ds_write_b128 %s, %s offset:%d" % (v(vT + 2), v(NB + 4 * i, 4), REGB - 65536 + i * KB))
    P.post("kv%d" % L)
    A("s_lshl_b32 %s, %s, 2" % (s(sT0), s(sFG)))
    A("s_add_u32 %s, %s, %s" % (s(sT0), s(sT0), s(sWAVE)))
    A("s_mul_i32 %s, %s, %d" % (s(sT0), s(sT0), 28 * KB))
    A("s_add_u32 %s, %s, %d" % (s(sT0), s(sT0), WO))
    for i in range(8):
        A("v_cvt_pk_bf16_f32 %s, %s, %s" % (v(vQ + i), v(accQ + 2 * i), v(accQ + 2 * i + 1)))
    A("v_and_b32 %s, 31, %s" % (v(vT), v(vLANE)))
    A("v_lshrrev_b32 %s, 5, %s" % (v(vT + 1), v(vLANE)))
    A("v_lshlrev_b32 %s, 2, %s" % (v(vT + 1), v(vT + 1)))
    A("v_sub_u32 %s, %s, %s" % (v(vT), v(vT), v(vT + 1)))
    A("v_mov_b32 %s, 0" % v(vT + 1))
    A("v_mov_b32 %s, 0x%x" % (v(vT + 3), f32bits(-1e9)))
    for r in range(0, 16, 2):
        A("v_cmp_gt_i32 vcc, %d, %s" % (8 * (r >> 2) + (r & 3), v(vT)))
        A("v_cmp_gt_i32 %s, %d, %s" % (s(sEX, 2), 8 * ((r + 1) >> 2) + ((r + 1) & 3), v(vT)))
        A("v_cndmask_b32 %s, %s, %s, vcc" % (v(SA + r), v(vT + 3), v(vT + 1)))
        A("v_cndmask_b32 %s, %s, %s, vcc" % (v(SB_ + r), v(vT + 1), v(vT + 3)))
        A("v_cndmask_b32 %s, %s, %s, %s" % (v(SA + r + 1), v(vT + 3), v(vT + 1), s(sEX, 2)))
        A("v_cndmask_b32 %s, %s, %s, %s" % (v(SB_ + r + 1), v(vT + 1), v(vT + 3), s(sEX, 2)))
    A("s_lshl_b32 %s, %s, 12" % (s(sT1), s(sWAVE)))
    A("v_add_u32 %s, %s, %s" % (v(vT + 2), s(sT1), v(vL16b)))
    P.wait("x", "kv%d" % L)
    stamp(A, "P2.nb")
    wof = Fill()
    base = REGB - 65536
    vM = 4
    order = [1, 2, 3, 4, 5, 6, 7, 0, 8]
    buf = {}
    for i, t in enumerate(order):
        buf[t] = SA if t == 0 else SB_ if t == 8 else (SC_ if i % 2 == 0 else SD_)
    fr = [(t, h) for t in order for h in range(2)]
    rd = {}
    NKB = 3

    def issue(i):
        t, h = fr[i]
        rd[i] = A("ds_read_b128 %s, %s offset:%d" % (v(KBUF + (i % NKB) * 4, 4), v(vT + 2), base + t * 4096 + h * KB))

    issue(0)
    issue(1)
    A("v_mov_b32 %s, 0x%x" % (v(vM), f32bits(-3e38)))
    A("v_mov_b32 %s, 0x%x" % (v(vM + 1), f32bits(-3e38)))
    fill = Fill()

    def maxlist(b):
        return ["v_max3_f32 %s, %s, %s, %s" % (v(vM + (k & 1)), v(vM + (k & 1)), v(b + 2 * k), v(b + 2 * k + 1)) for k in range(8)]

    pend = []
    for i, (t, h) in enumerate(fr):
        A.wait(rd[i])
        d = v(buf[t], 16)
        c = d if (h == 1 or t in (0, 8)) else "0"
        A("%s %s, %s, %s, %s" % (MF32, d, v(KBUF + (i % NKB) * 4, 4), v(vQ + 4 * h, 4), c))
        if i + 2 < len(fr):
            issue(i + 2)
        if h == 1:
            if pend:
                fill.add(maxlist(pend.pop(0)))
            pend.append(buf[t])
        fill.emit(A, 8 if h == 1 else 0)
        if h == 0:
            wof.emit(A, 2)
    fill.flush(A)
    for it in maxlist(pend.pop(0)):
        A(it)
    A("v_max_f32 %s, %s, %s" % (v(vM), v(vM), v(vM + 1)))
    A("v_mov_b32 %s, %s" % (v(vM + 1), v(vM)))
    A("v_permlane32_swap_b32 %s, %s" % (v(vM), v(vM + 1)))
    A("v_max_f32 %s, %s, %s" % (v(vM), v(vM), v(vM + 1)))
    cs = (DH ** -0.5) * math.log2(math.e)
    A("s_mov_b32 %s, 0x%x" % (s(sC0), f32bits(cs)))
    A("v_mul_f32 %s, %s, %s" % (v(vM), s(sC0), v(vM)))

    def softmax_list(b):
        o = []
        for r in range(16):
            o.append("v_fma_f32 %s, %s, %s, -%s" % (v(b + r), v(b + r), s(sC0), v(vM)))
            if r >= 1:
                o.append("v_exp_f32 %s, %s" % (v(b + r - 1), v(b + r - 1)))
        o.append("v_exp_f32 %s, %s" % (v(b + 15), v(b + 15)))
        for i in range(8):
            o.append("v_cvt_pk_bf16_f32 %s, %s, %s" % (v(b + i), v(b + 2 * i), v(b + 2 * i + 1)))
        return o

    proc = [(0, SA), (8, SB_), (7, SC_), (6, SD_)]
    free_after = [SA, SB_, SC_, SD_]
    rec = [1, 2, 3, 4, 5]
    for k, t in enumerate(rec):
        proc.append((t, free_after[k % 4]))
    stream = []
    for k, (t, b) in enumerate(proc):
        stream += [("v", t, 0), ("v", t, 1)]
        if k < len(rec):
            stream += [("k", rec[k], 0), ("k", rec[k], 1)]
    rd = {}

    def issue2(i):
        kind, t, h = stream[i]
        rd[i] = A("ds_read_b128 %s, %s offset:%d" % (v(KBUF + (i % NKB) * 4, 4), v(vT + 2), base + t * 4096 + (2048 if kind == "v" else 0) + h * KB))

    issue2(0)
    issue2(1)
    si = 0
    first = True
    mf = []
    for k, (t, b) in enumerate(proc):
        sm = softmax_list(b)
        step = max(1, len(sm) // (len(mf) + 1)) if mf else 0
        for j, it in enumerate(sm):
            A(it)
            if mf and (j + 1) % step == 0:
                mf.pop(0)(A)
            if j % 8 == 3:
                wof.emit(A, 1)
        while mf:
            mf.pop(0)(A)

        def mk(i, dst, bop, c):
            def f(A):
                A.wait(rd[i])
                A("%s %s, %s, %s, %s" % (MF32, dst, v(KBUF + (i % NKB) * 4, 4), bop, c))
                if i + 2 < len(stream):
                    issue2(i + 2)
            return f

        mf.append(mk(si, v(accO, 16), v(b, 4), "0" if first else v(accO, 16)))
        mf.append(mk(si + 1, v(accO, 16), v(b + 4, 4), v(accO, 16)))
        first = False
        si += 2
        if k < len(rec):
            mf.append(mk(si, v(b, 16), v(vQ, 4), "0"))
            mf.append(mk(si + 1, v(b, 16), v(vQ + 4, 4), v(b, 16)))
            si += 2
    while mf:
        mf.pop(0)(A)
    wof.flush(A)
    P.post("kvfree%d" % L)
    stamp(A, "P2.pv")
    A("s_lshl_b32 %s, %s, 5" % (s(sT0), s(sGTG)))
    A("s_add_u32 %s, %s, %s" % (s(sT0), s(sT0), s(sMEM)))
    A("s_lshl_b32 %s, %s, 10" % (s(sT0), s(sT0)))
    A("s_add_u32 %s, %s, %d" % (s(sT0), s(sT0), OB + L * OB_ST))
    A("v_mov_b32 %s, %s" % (v(vM), v(accO + 12)))
    A("v_mov_b32 %s, %s" % (v(vM + 1), v(accO + 12)))
    A("v_permlane32_swap_b32 %s, %s" % (v(vM), v(vM + 1)))
    A("v_rcp_f32 %s, %s" % (v(vM + 1), v(vM + 1)))
    for r in range(16):
        A("v_mul_f32 %s, %s, %s" % (v(accO + r), v(accO + r), v(vM + 1)))
    for i in range(8):
        A("v_cvt_pk_bf16_f32 %s, %s, %s" % (v(accO + i), v(accO + 2 * i), v(accO + 2 * i + 1)))
    lines = ["buffer_store_dwordx4 %s, %s, %s, %s offen offset:%d" % (v(accO + 4 * c, 4), v(vOST), s(sWS, 4), s(sT0), c * 512) for c in range(2)]
    if ENV("PT_O", "0") == "1":
        two_way(A, lines)
    else:
        for ln in lines:
            A(ln + " sc1")
    signal(A, 5 * L + 2)
    stamp(A, "P2.sig")


def reduce_finish(P, L, tag, flagval, final, hpart=False):
    A = P.A
    P.post("red%s" % tag)
    R = 16
    HS = 96 - 0
    hs = [96 + i for i in range(12)] + [8 + i for i in range(4)]
    if hpart:
        P.wait("h", "hred%s" % tag)
        toks = []
        for w in range(4):
            for c in range(4):
                toks.append(A("ds_read_b128 %s, %s offset:%d" % (v(R + (w * 4 + c) * 4, 4), v(vT + 3), w * RED_WAVE + c * 16)))
        A.wait(toks[7])
        for i in range(16):
            A("v_add_f32 %s, %s, %s" % (v(R + i), v(R + i), v(R + 16 + i)))
        A.wait(toks[15])
        P.post("hfree%s" % tag)
        for i in range(16):
            A("v_add_f32 %s, %s, %s" % (v(R + 32 + i), v(R + 32 + i), v(R + 48 + i)))
        for i in range(16):
            A("v_add_f32 %s, %s, %s" % (v(hs[i]), v(R + i), v(R + 32 + i)))
    P.wait("x", "red%s" % tag)
    toks = []
    for w in range(4):
        for c in range(4):
            toks.append(A("ds_read_b128 %s, %s offset:%d" % (v(R + (w * 4 + c) * 4, 4), v(vRED_R), w * RED_WAVE + c * 16)))
    RS = 80
    for i in range(8):
        A("v_lshlrev_b32 %s, 16, %s" % (v(RS + 2 * i), v(vRES + i)))
        A("v_and_b32 %s, 0xffff0000, %s" % (v(RS + 2 * i + 1), v(vRES + i)))
    A.wait(toks[7])
    for i in range(16):
        A("v_add_f32 %s, %s, %s" % (v(R + i), v(R + i), v(R + 16 + i)))
    if hpart:
        for i in range(16):
            A("v_add_f32 %s, %s, %s" % (v(R + i), v(R + i), v(hs[i])))
    A.wait(toks[15])
    P.post("redfree%s" % tag)
    for i in range(16):
        A("v_add_f32 %s, %s, %s" % (v(R + 32 + i), v(R + 32 + i), v(R + 48 + i)))
    for i in range(16):
        A("v_add_f32 %s, %s, %s" % (v(R + i), v(R + i), v(R + 32 + i)))
    for i in range(8):
        A("v_cvt_pk_bf16_f32 %s, %s, %s" % (v(R + 16 + i), v(R + 2 * i), v(R + 2 * i + 1)))
    for i in range(8):
        A("v_lshlrev_b32 %s, 16, %s" % (v(R + 2 * i), v(R + 16 + i)))
        A("v_and_b32 %s, 0xffff0000, %s" % (v(R + 2 * i + 1), v(R + 16 + i)))
    for i in range(16):
        A("v_add_f32 %s, %s, %s" % (v(R + i), v(R + i), v(RS + i)))
    for i in range(8):
        A("v_cvt_pk_bf16_f32 %s, %s, %s" % (v(vRES + i), v(R + 2 * i), v(R + 2 * i + 1)))
    A("s_mov_b32 %s, 0x7f7f7f7f" % s(sEX))
    A("s_mov_b32 %s, 0x7f7f7f7f" % s(sEX + 1))
    if final:
        A("s_mov_b64 exec, %s" % s(sEX, 2))
        for c in range(2):
            A("buffer_store_dwordx4 %s, %s, %s, 0 offen offset:%d" % (v(vRES + 4 * c, 4), v(vOUTO), s(sOUT, 4), c * 16) + ENV("OS", ""))
        A("s_mov_b64 exec, -1")
        return
    A("s_mov_b32 %s, %d" % (s(sT0), XF))
    for q in range(4):
        A("v_mov_b32 %s, 0" % v(R + 48 + q))
    A("s_mov_b64 exec, %s" % s(sEX, 2))
    two_way(A, ["buffer_store_dwordx4 %s, %s, %s, %s offen offset:%d" % (v(vRES + 4 * c, 4), v(vXST), s(sWS, 4), s(sT0), c * 512) for c in range(2)])
    for i in range(8):
        A("v_lshlrev_b32 %s, 16, %s" % (v(R), v(vRES + i)))
        A("v_and_b32 %s, 0xffff0000, %s" % (v(R + 1), v(vRES + i)))
        A("v_add_f32 %s, %s, %s" % (v(R + 48), v(R + 48), v(R)))
        A("v_fmac_f32 %s, %s, %s" % (v(R + 49), v(R), v(R)))
        A("v_add_f32 %s, %s, %s" % (v(R + 50), v(R + 50), v(R + 1)))
        A("v_fmac_f32 %s, %s, %s" % (v(R + 51), v(R + 1), v(R + 1)))
    A("s_mov_b64 exec, -1")
    A("v_add_f32 %s, %s, %s" % (v(R + 48), v(R + 48), v(R + 50)))
    A("v_add_f32 %s, %s, %s" % (v(R + 49), v(R + 49), v(R + 51)))
    src, dst = 48, 50
    for mod in ("quad_perm:[1,0,3,2]", "quad_perm:[2,3,0,1]", "row_half_mirror"):
        for q in range(2):
            A("v_add_f32_dpp %s, %s, %s %s row_mask:0xf bank_mask:0xf" % (v(R + dst + q), v(R + src + q), v(R + src + q), mod))
        src, dst = dst, src
    A("s_mov_b32 %s, 0x01010101" % s(sEX))
    A("s_mov_b32 %s, 0x01010101" % s(sEX + 1))
    A("s_mov_b32 %s, %d" % (s(sT0), ST))
    A("s_mov_b64 exec, %s" % s(sEX, 2))
    two_way(A, ["buffer_store_dwordx2 %s, %s, %s, %s offen" % (v(R + src, 2), v(vSTO), s(sWS, 4), s(sT0))])
    A("s_mov_b64 exec, -1")
    signal(A, flagval)


def red_write(A, acc, k):
    A("ds_write_b128 %s, %s offset:%d" % (v(vRED_W), v(acc + k * 4, 4), (k // 7) * 16 * RED_PITCH + (k % 7) * 64))


def phase3(P, L):
    A = P.A
    A.comment("================ P3 layer %d" % L)
    A("s_lshl_b32 %s, %s, 5" % (s(sT0), s(sOTG)))
    A("s_lshl_b32 %s, %s, 2" % (s(sT1), s(sWAVE)))
    A("s_add_u32 %s, %s, %s" % (s(sT0), s(sT0), s(sT1)))
    A("s_lshl_b32 %s, %s, 10" % (s(sT0), s(sT0)))
    A("s_add_u32 %s, %s, %d" % (s(sT0), s(sT0), OB + L * OB_ST))
    A("s_add_u32 %s, %s, %d" % (s(sT1), s(sT0), 16 * KB))
    polla(A, aPB, 5 * L + 2)
    stamp(A, "P3.polled")
    XO, acc = 72, 16
    xt = {}
    for ks in range(4):
        for tt in range(2):
            xt[(tt, ks)] = A("buffer_load_dwordx4 %s, %s, %s, %s offen offset:%d" % (v(XO + (tt * 4 + ks) * 4, 4), v(vL16), s(sWS, 4), s(sT0 + tt), ks * KB))
    P.wait("x", "kvfree%d" % L)
    for ks in range(4):
        for tt in range(2):
            A.wait(xt[(tt, ks)])
            for ft in range(7):
                d = v(acc + (tt * 7 + ft) * 4, 4)
                A("%s %s, %s, %s, %s" % (MF16, d, a((ks * 7 + ft) * 4, 4), v(XO + (tt * 4 + ks) * 4, 4), "0" if ks == 0 else d))
                if ks == 3 and (tt * 7 + ft) >= 5:
                    red_write(A, acc, tt * 7 + ft - 5)
    for k in range(9, 14):
        red_write(A, acc, k)
    stamp(A, "P3.mfma")
    reduce_finish(P, L, "3_%d" % L, 5 * L + 3, False)
    stamp(A, "P3.sig")


def gelu_list(acc, vK0, vK1, vS2, tmp, out, store):
    o = []
    for r in range(8):
        o.append("v_mul_f32 %s, %s, %s" % (v(tmp + r), v(acc + r), v(acc + r)))
    for r in range(8):
        o.append("v_fma_f32 %s, %s, %s, %s" % (v(tmp + r), v(tmp + r), v(vK1), v(vK0)))
    for r in range(8):
        o.append("v_mul_f32 %s, %s, %s" % (v(tmp + r), v(tmp + r), v(acc + r)))
    for r in range(8):
        o.append("v_exp_f32 %s, %s" % (v(tmp + r), v(tmp + r)))
        o.append("v_mul_f32 %s, %s, %s" % (v(acc + r), v(acc + r), v(acc + 8 + r)))
    for r in range(8):
        o.append("v_fma_f32 %s, %s, %s, %s" % (v(tmp + r), v(tmp + r), v(vS2), v(vS2)))
    for r in range(8):
        o.append("v_rcp_f32 %s, %s" % (v(tmp + r), v(tmp + r)))
    for r in range(8):
        o.append("v_mul_f32 %s, %s, %s" % (v(tmp + r), v(acc + r), v(tmp + r)))
    for i in range(4):
        o.append("v_cvt_pk_bf16_f32 %s, %s, %s" % (v(out + i), v(tmp + 2 * i), v(tmp + 2 * i + 1)))
    o.append(store)
    return o


def phase4(P, L):
    A = P.A
    A.comment("================ P4 layer %d" % L)
    A("s_mul_i32 %s, %s, 112" % (s(sT3), s(sGTG)))
    A("s_mul_i32 %s, %s, 7" % (s(sT2), s(sMEM)))
    A("s_add_u32 %s, %s, %s" % (s(sT3), s(sT3), s(sT2)))
    A("s_lshl_b32 %s, %s, 10" % (s(sT3), s(sT3)))
    A("s_add_u32 %s, %s, %d" % (s(sT3), s(sT3), HB + L * HB_ST))
    A("s_add_u32 %s, %s, 4096" % (s(sT1), s(sT3)))
    polla(A, aPA, 5 * L + 3)
    stamp(A, "P4.polled")
    vS, vA_, vSD, vAUG = 96, 104, 105, 100
    vK0, vK1, vS2 = 13, 14, 12
    accs = [16, 32, 48, 64]
    RING, DEPTH = mkring(80, 4), 5
    TMP, OUTS = 96, [104, 8]
    xt, stt, rest = load_x_and_stats(A, vS, " sc1", int(ENV("NF", "14")))
    c0 = -2.0 * math.sqrt(2.0 / math.pi) * math.log2(math.e)
    fill = Fill()
    xop = lambda st_: a(4 * st_, 4)
    ops = []
    for st_ in range(29):
        for t in range(3):
            o1 = Op(GSLOT[t] * TILE + st_ * KB, mf32(A, accs[t], st_ == 0, False, xop(st_)))
            if st_ < 28 and t == 0:
                o1.before.append(lambda st_=st_: A.wait(xt[st_]))
            ops.append(o1)
    start = {0: 0}
    for t in range(3, 7):
        start[t] = len(ops)
        for st_ in range(29):
            ops.append(Op(GSLOT[t] * TILE + st_ * KB, mf32(A, accs[t % 4], st_ == 0, False, xop(st_)), slots=int(ENV("P4SLOTS", "5"))))
    for k, f in enumerate(rest):
        ops[2 * k].after.append(f)
    ops[max(0, 2 * (len(rest) - 1))].after.append(lambda: P.post("xl4_%d" % L))
    gate(P, ops, 0, DEPTH, "h", "g2_%d" % L)
    for t in range(3, 7):
        gate(P, ops, start[t], DEPTH, "h", "g%d_%d" % (t, L), lead=int(ENV("GLEAD", "5")))
        ops[start[t]].after.append(lambda t=t: P.post("gd%d_%d" % (t - 1, L)))
    marks = {}

    def stats_hook():
        A.wait(*stt)
        lst = ln_stats_list(vS, vA_, vSD, vAUG)
        lst += ["v_mul_f32 %s, 0x%x, %s" % (v(vK0), f32bits(c0), v(vA_)),
                "v_mul_f32 %s, %s, %s" % (v(vK1), v(vA_), v(vA_)),
                "v_mul_f32 %s, %s, %s" % (v(vK1), v(vK1), v(vK0)),
                "v_mul_f32 %s, 0x%x, %s" % (v(vK1), f32bits(0.044715), v(vK1)),
                "v_mul_f32 %s, %s, %s" % (v(vS2), v(vSD), v(vSD))]
        marks["st"] = fill.add(lst)

    ops[3 * 12].before.append(stats_hook)
    ops[3 * 27].before.append(lambda: fill.until(A, marks["st"]))

    def epi(t):
        out = OUTS[t % 2]
        ln = "buffer_store_dwordx4 %s, %s, %s, %s offen offset:%d" % (v(out, 4), v(vL16), s(sWS, 4), s(sT3 if t < 4 else sT1), (t % 4) * KB)
        if ENV("PT_H", "0") == "1":
            st_ = lambda A, ln=ln: two_way(A, [ln])
        else:
            st_ = ln + " sc1"
        return gelu_list(accs[t % 4], vK0, vK1, vS2, TMP, out, st_)

    def add_epi(t):
        marks[t] = fill.add(epi(t))

    ops[start[3] + 1].after.append(lambda: (add_epi(0), add_epi(1), add_epi(2)))
    for t in range(4, 7):
        ops[start[t]].before.append(lambda t=t: fill.until(A, marks[t - 4]))
        ops[start[t] + 1].after.append(lambda t=t: add_epi(t - 1))
    if STAMPS is not None:
        ops[start[3]].before.append(lambda: stamp(A, "P4.g012"))
        if ENV("DETAIL") == "P4":
            for t in range(4, 7):
                ops[start[t]].before.append(lambda t=t: stamp(A, "P4.t%d" % t))
    run_stream(A, ops, RING, DEPTH, fill)
    P.post("gd6_%d" % L)
    stamp(A, "P4.g6")
    fill.flush(A)
    fill.add(epi(6))
    fill.flush(A)
    signal(A, 5 * L + 4)
    stamp(A, "P4.sig")


def phase5(P, L):
    A = P.A
    A.comment("================ P5 layer %d" % L)
    acc = 16
    RING, DEPTH = mkring(72, 6, False), 5
    vHL, vDW = 96, 97
    A("v_and_b32 %s, 15, %s" % (v(vHL), v(vLANE)))
    A("v_lshlrev_b32 %s, 4, %s" % (v(vHL), v(vHL)))
    A("v_lshrrev_b32 %s, 4, %s" % (v(vT), v(vLANE)))
    A("v_lshl_add_u32 %s, %s, 9, %s" % (v(vHL), v(vT), v(vHL)))
    A("s_mul_i32 %s, %s, %d" % (s(sT2), s(sWAVE), 7 * KB))
    A("v_add_u32 %s, %s, %s" % (v(vDW), s(sT2), v(vL16)))
    A("v_add_u32 %s, %s, %s" % (v(vDW + 1), s(sT2), v(vL16b)))
    A("v_add_u32 %s, %s, %s" % (v(vDW + 2), s(sT2), v(vL16c)))
    A("s_mul_i32 %s, %s, 112" % (s(sT0), s(sOTG)))
    A("s_mul_i32 %s, %s, 28" % (s(sT1), s(sWAVE)))
    A("s_add_u32 %s, %s, %s" % (s(sT0), s(sT0), s(sT1)))
    A("s_lshl_b32 %s, %s, 10" % (s(sT0), s(sT0)))
    A("s_add_u32 %s, %s, %d" % (s(sT0), s(sT0), HB + L * HB_ST))
    polla(A, aPB, 5 * L + 4)
    stamp(A, "P5.polled")
    A("s_setprio 0")
    xt = {}
    for ks in range(NX5):
        for tt in range(2):
            xt[(tt, ks)] = A("buffer_load_dwordx4 %s, %s, %s, %s offen offset:%d%s" % (a((ks * 2 + tt) * 4, 4), v(vHL), s(sWS, 4), s(sT0), (ks % 2) * 2048 + tt * 256, nt("h")))
        if ks % 2 == 1 and ks < NX5 - 1:
            A("s_add_u32 %s, %s, 4096" % (s(sT0), s(sT0)))
        if ks == 1:
            P.post("xl5_%d" % L)
    if ENV("DETAIL") == "H":
        stamp(A, "P5.issued")
        A.wait_all_vm()
        stamp(A, "P5.harr")

    def addr(off):
        if off < 65536:
            return v(vDW), off
        if off < 131072:
            return v(vDW + 1), off - 65536
        return v(vDW + 2), off - 131072

    ops = []
    for ks in range(NX5):
        for ft in range(7):
            def em(w, ks=ks, ft=ft):
                for tt in range(2):
                    d = v(acc + (tt * 7 + ft) * 4, 4)
                    A("%s %s, %s, %s, %s" % (MF16, d, w, a((ks * 2 + tt) * 4, 4), "0" if ks == 0 else d))
            op = Op(DSLOT[ks] * TILE + ft * KB, em)
            if ft == 0:
                op.before.append(lambda ks=ks: A.wait(xt[(0, ks)], xt[(1, ks)]))
                if ks > 0:
                    op.after.append(lambda ks=ks: P.post("dd%d_%d" % (ks - 1, L)))
            ops.append(op)
    gate(P, ops, 0, DEPTH, "h", "d4_%d" % L, own=True)
    dtok = {}

    def xdma(j):
        A("s_mul_i32 %s, %s, %d" % (s(sT0), s(sFG), 14 * 28 * KB))
        A("s_add_u32 %s, %s, %s" % (s(sT0), s(sT0), s(sT2)))
        A("s_add_u32 %s, %s, %d" % (s(sT0), s(sT0), WD + j * 28 * KB))
        A("s_add_u32 %s, %s, %d" % (s(sT1), s(sT2), DSLOT[j] * TILE))
        dtok[j] = []
        for i in range(7):
            if i % 4 == 0:
                A("s_mov_b32 m0, %s" % s(sT1))
            dtok[j].append(A("buffer_load_dwordx4 %s, %s, %s offen offset:%d%s lds" % (v(vL16), s(sWS, 4), s(sT0), (i % 4) * KB, nt("d"))))
            if i == 3:
                A("s_add_u32 %s, %s, 4096" % (s(sT0), s(sT0)))
                A("s_add_u32 %s, %s, 4096" % (s(sT1), s(sT1)))

    for ks in range(5, NX5):
        ops[(ks - 5) * 7 + 6].after.append(lambda ks=ks: xdma(ks))
        ops[ks * 7].pre.append(lambda ks=ks: A.wait(*dtok[ks]))
    if STAMPS is not None and L == 1 and ENV("DETAIL") == "P5":
        for ks in (1, 2, 3, 4, 5, 6, 7, 8):
            ops[ks * 7].after.append(lambda ks=ks: stamp(A, "P5.k%d" % ks))
    run_stream(A, ops, RING, DEPTH, None, addr=addr)
    P.post("dd%d_%d" % (NX5 - 1, L))
    A("s_setprio 3")
    A("v_subrev_u32 %s, %d, %s" % (v(vT + 3), REGB - REG2, v(vRED_R)))
    P.wait("x", "dd7_%d" % L)
    for k in range(14):
        red_write(A, acc, k)
    stamp(A, "P5.mfma")
    reduce_finish(P, L, "5_%d" % L, 5 * L + 5, L == 1, hpart=True)
    stamp(A, "P5.sig")


def gen_helper(P):
    A = P.A
    T = {}
    A("v_add_u32 %s, 0x10000, %s" % (v(vL16b), v(vL16)))
    A("v_add_u32 %s, 0x20000, %s" % (v(vL16c), v(vL16)))
    A("s_mul_i32 %s, %s, %d" % (s(sT3), s(sHW), 7 * KB))
    A("v_lshlrev_b32 v123, 7, %s" % v(vLANE))
    A("s_lshl_b32 %s, %s, 2" % (s(sT0), s(sTEAM)))
    A("s_add_u32 %s, %s, %s" % (s(sGTG), s(sT0), s(sHW)))

    def dma(key, sidx, stride, gbase, n, slot):
        A("s_mul_i32 %s, %s, %d" % (s(sT0), s(sidx), stride))
        A("s_add_u32 %s, %s, %s" % (s(sT0), s(sT0), s(sT3)))
        A("s_add_u32 %s, %s, %d" % (s(sT0), s(sT0), gbase))
        A("s_add_u32 %s, %s, %d" % (s(sT1), s(sT3), slot * TILE))
        toks = []
        for i in range(n):
            if i % 4 == 0:
                A("s_mov_b32 m0, %s" % s(sT1))
            toks.append(A("buffer_load_dwordx4 %s, %s, %s offen offset:%d%s lds" % (v(vL16), s(sWS, 4), s(sT0), (i % 4) * KB, nt(key[0]))))
            if i % 4 == 3 and i + 1 < n:
                A("s_add_u32 %s, %s, 4096" % (s(sT0), s(sT0)))
                A("s_add_u32 %s, %s, 4096" % (s(sT1), s(sT1)))
        T[key] = toks

    q = lambda L, p: dma(("q", L, p), sMEM, 3 * TILE, WQKV + p * TILE, 8, QSLOT[L][p])
    g = lambda L, t: dma(("g", L, t), sMEM, 7 * TILE, WGU + t * TILE, 8, GSLOT[t])
    d = lambda L, j: dma(("d", L, j), sFG, 14 * 28 * KB, WD + j * 28 * KB, 7, DSLOT[j])

    HACC = 0

    def sreg(j, i):
        k = (j - NX5) * 7 + i
        return a(56 + 4 * k, 4) if k < 18 else v(8 + 4 * (k - 18), 4)

    hreg = lambda j, tt: v(76 + ((j - NX5) * 2 + tt) * 4, 4)

    def stage(j):
        A("s_mul_i32 %s, %s, %d" % (s(sT0), s(sFG), 14 * 28 * KB))
        A("s_add_u32 %s, %s, %s" % (s(sT0), s(sT0), s(sT3)))
        A("s_add_u32 %s, %s, %d" % (s(sT0), s(sT0), WD + j * 28 * KB))
        T[("s", j)] = load_frags(A, [sreg(j, i) for i in range(7)], sT0, nt("d"))

    A("v_and_b32 v120, 15, %s" % v(vLANE))
    A("v_lshlrev_b32 v120, 4, v120")
    A("v_lshrrev_b32 v121, 4, %s" % v(vLANE))
    A("v_lshl_add_u32 v120, v121, 9, v120")
    A("v_and_b32 v122, 15, %s" % v(vLANE))
    A("v_mul_u32_u24 v122, %d, v122" % RED_PITCH)
    A("v_lshl_add_u32 v122, v121, 4, v122")
    A("s_mul_i32 %s, %s, %d" % (s(sT0), s(sHW), RED_WAVE))
    A("s_add_u32 %s, %s, %d" % (s(sT0), s(sT0), REG2))
    A("v_add_u32 v121, %s, v122" % s(sT0))
    A("s_lshl_b32 %s, %s, 2" % (s(sT0), s(sTEAM)))
    A("s_add_u32 %s, %s, %s" % (s(sOTG), s(sT0), s(sTG)))

    def landed(name, *keys):
        A.wait(*[T[k] for k in keys])
        P.post(name)

    def warm(sidx, stride, gbase, nbytes, nshare_sel):
        nshare, ssel = nshare_sel
        part = nbytes // (nshare * 4)
        assert part <= 8192
        A("s_mul_i32 %s, %s, %d" % (s(sT0), s(sidx), stride))
        A("s_lshl_b32 %s, %s, 2" % (s(sT1), s(ssel)))
        A("s_add_u32 %s, %s, %s" % (s(sT1), s(sT1), s(sHW)))
        A("s_mul_i32 %s, %s, %d" % (s(sT1), s(sT1), part))
        A("s_add_u32 %s, %s, %s" % (s(sT0), s(sT0), s(sT1)))
        A("s_add_u32 %s, %s, %d" % (s(sT0), s(sT0), gbase))
        nl = (part + 127) // 128 + 1
        if nl < 64:
            A("s_mov_b64 exec, 0x%x" % ((1 << nl) - 1) if nl <= 31 else "s_mov_b64 exec, -1")
        A("buffer_load_dword v124, v123, %s, %s offen" % (s(sWS, 4), s(sT0)))
        A("s_mov_b64 exec, -1")

    A("s_lshl_b32 %s, %s, 2" % (s(sC0), s(sHALF)))
    A("s_add_u32 %s, %s, %s" % (s(sC0), s(sC0), s(sTG)))
    warm_wo = lambda: warm(sFG, 112 * KB, WO, 112 * KB, (8, sC0)) if ENV("W_WO", "0") == "1" else None
    warm_q = lambda: [warm(sMEM, 3 * TILE, WQKV + p * 2 * TILE, (2 * TILE if p == 0 else TILE), (2, sHALF)) for p in range(2)]
    warm_d58 = lambda: warm(sFG, 14 * 28 * KB, WD + 5 * 28 * KB, 4 * 28 * KB, (8, sC0))
    warm_g = lambda t0: warm(sMEM, 7 * TILE, WGU + t0 * TILE, 2 * TILE, (2, sHALF))

    def touch_o(L):
        A("s_lshl_b32 %s, %s, 5" % (s(sT0), s(sGTG)))
        A("s_add_u32 %s, %s, %s" % (s(sT0), s(sT0), s(sMEM)))
        A("s_lshl_b32 %s, %s, 10" % (s(sT0), s(sT0)))
        A("s_add_u32 %s, %s, %d" % (s(sT0), s(sT0), OB + L * OB_ST))
        A("s_add_u32 %s, %s, %d" % (s(sT1), s(sT0), 16 * KB))
        A("s_mov_b64 exec, 0xff")
        A("buffer_load_dword v124, v123, %s, %s offen" % (s(sWS, 4), s(sT0)))
        A("buffer_load_dword v124, v123, %s, %s offen" % (s(sWS, 4), s(sT1)))
        A("s_mov_b64 exec, -1")

    def touch_h(L):
        A("s_mul_i32 %s, %s, 112" % (s(sT0), s(sGTG)))
        A("s_mul_i32 %s, %s, 7" % (s(sT1), s(sMEM)))
        A("s_add_u32 %s, %s, %s" % (s(sT0), s(sT0), s(sT1)))
        A("s_lshl_b32 %s, %s, 10" % (s(sT0), s(sT0)))
        A("s_add_u32 %s, %s, %d" % (s(sT0), s(sT0), HB + L * HB_ST))
        A("s_mov_b32 %s, -1" % s(sEX))
        A("s_mov_b32 %s, 0x00ffffff" % s(sEX + 1))
        A("s_mov_b64 exec, %s" % s(sEX, 2))
        A("buffer_load_dword v124, v123, %s, %s offen" % (s(sWS, 4), s(sT0)))
        A("s_mov_b64 exec, -1")

    NS0 = int(ENV("NS0", "0"))
    greg = lambda t, i: a(4 * i, 4) if t % 2 == 1 else v(76 + 4 * i, 4)

    def gstage(L, t):
        A("s_mul_i32 %s, %s, %d" % (s(sT0), s(sMEM), 7 * TILE))
        A("s_add_u32 %s, %s, %s" % (s(sT0), s(sT0), s(sT3)))
        A("s_add_u32 %s, %s, %d" % (s(sT0), s(sT0), WGU + t * TILE))
        T[("gr", L, t)] = load_frags(A, [greg(t, i) for i in range(8)], sT0)

    def gput(L, t):
        A.wait(*T[("gr", L, t)])
        base = GSLOT[t] * TILE
        A("v_add_u32 v122, %s, %s" % (s(sT3), v(vL16 + base // 65536)))
        for i in range(8):
            off = base % 65536 + i * KB
            assert off < 65536
            A("ds_write_b128 v122, %s offset:%d" % (greg(t, i), off))
        P.post("g%d_%d" % (t, L))

    for L in range(2):
        AG = int(ENV("A_G34", "0")) if L > 0 else 0
        if L == 0:
            A("s_mul_i32 %s, %s, %d" % (s(sT0), s(sMEM), 3 * TILE))
            A("s_add_u32 %s, %s, %d" % (s(sT0), s(sT0), WQKV))
            T["kvq"] = []
            for i in range(8):
                A("s_add_u32 %s, %s, %d" % (s(sT1), s(sHW), 4 * i))
                if i == 7:
                    A("s_min_u32 %s, %s, 28" % (s(sT1), s(sT1)))
                A("s_lshl_b32 %s, %s, 10" % (s(sT1), s(sT1)))
                for p_ in (1, 2):
                    A("s_add_u32 %s, %s, %d" % (s(sT2), s(sT1), QSLOT[0][p_] * TILE))
                    A("s_mov_b32 m0, %s" % s(sT2))
                    A("s_add_u32 %s, %s, %s" % (s(sC1), s(sT0), s(sT1)))
                    A("s_add_u32 %s, %s, %d" % (s(sC1), s(sC1), p_ * TILE))
                    T["kvq"].append(A("buffer_load_dwordx4 %s, %s, %s offen lds" % (v(vL16), s(sWS, 4), s(sC1))))
            P.wait("x", "xl1_0")
            q(0, 0)
        if L == 0:
            for qq in range(3):
                A.wait(*T["kvq"][:4 * (qq + 1)])
                P.post("kvp%d" % qq)
            A.wait(*T["kvq"])
            P.post("kv_w0")
            A("s_lshl_b32 %s, %s, 7" % (s(sT0), s(sTEAM)))
            A("s_lshl_b32 %s, %s, 2" % (s(sT1), s(sMEM)))
            A("s_add_u32 %s, %s, %s" % (s(sT0), s(sT0), s(sT1)))
            A("s_add_u32 %s, %s, %d" % (s(sT0), s(sT0), FLAGS + 4096))
            A("v_mov_b32 v124, %s" % s(sPURE))
            A("v_mov_b32 v127, 0")
            Lx = newlbl("xcc")
            A("s_cmp_lg_u32 %s, 0" % s(sHW))
            A("s_cbranch_scc1 %s" % Lx)
            A("s_mov_b64 exec, 1")
            A("buffer_store_dword v124, v127, %s, %s offen sc1" % (s(sWS, 4), s(sT0)))
            A("s_mov_b64 exec, -1")
            A.label(Lx)
            A("s_lshl_b32 %s, %s, 4" % (s(sT0), s(sTEAM)))
            A("s_add_u32 %s, %s, %s" % (s(sT0), s(sT0), s(sMEM)))
            A("s_lshl_b32 %s, %s, 2" % (s(sT0), s(sT0)))
            A("s_add_u32 %s, %s, %s" % (s(sT0), s(sT0), s(sHW)))
            A("s_lshl_b32 %s, %s, 12" % (s(sT0), s(sT0)))
            A("s_add_u32 %s, %s, %d" % (s(sT0), s(sT0), KV + KV_SZ))
            for i in range(4):
                A("v_mov_b32 %s, -1" % v(76 + i))
            T["fill"] = [A("buffer_store_dwordx4 v[76:79], %s, %s, %s offen offset:%d sc1" % (v(vL16), s(sWS, 4), s(sT0), i * KB)) for i in range(4)]
            warm_wo()
            if ENV("PT_O", "0") == "1":
                touch_o(0)
            if ENV("S_G0", "0") == "1":
                warm_g(0)
            if ENV("S_G2", "0") == "1":
                warm_g(2)
        else:
            landed("kv_w%d" % L, ("q", L, 1), ("q", L, 2))
        landed("q_w%d" % L, ("q", L, 0), "fill")
        hstamp(A, "q.landed")
        if L > 0:
            P.wait("x", "xl1_%d" % L)
            for t in range(3, 3 + AG):
                gstage(L, t)
            warm_wo()
            if ENV("PT_O", "0") == "1":
                touch_o(L)
        else:
            for j in range(NX5, NX5 + NS0):
                stage(j)
        P.wait("x", "kv%d" % L)
        for t in (0, 1, 2):
            g(L, t)
        if ENV("B_G3", "0") == "1":
            warm_g(3)
        landed("g2_%d" % L, ("g", L, 0), ("g", L, 1), ("g", L, 2))
        hstamp(A, "g012.landed")
        if AG:
            P.wait("x", "redfree3_%d" % L)
            for t in range(3, 3 + AG):
                gput(L, t)
            A.wait_all_lg()
        P.wait("x", "xl4_%d" % L)
        for t in range(3 + AG, 5):
            g(L, t)
        for t in (5, 6):
            gstage(L, t)
            if t - 2 >= 3 + AG:
                landed("g%d_%d" % (t - 2, L), ("g", L, t - 2))
        hstamp(A, "g34.landed")
        P.wait("x", "gd2_%d" % L)
        hstamp(A, "gd2")
        for t in (5, 6):
            gput(L, t)
        d(L, 0)
        hstamp(A, "g56.landed")
        if ENV("C_D58", "2") == "2":
            warm_d58()
        if L == 0:
            for j in range(NX5 + NS0, 14):
                stage(j)
        for j in range(1, 5):
            P.wait("x", "gd%d_%d" % (j + 2, L))
            d(L, j)
        landed("d4_%d" % L, *[("d", L, j) for j in range(5)])
        hstamp(A, "d04.landed")
        A("s_mul_i32 %s, %s, 112" % (s(sT2), s(sOTG)))
        A("s_mul_i32 %s, %s, 28" % (s(sT1), s(sHW)))
        A("s_add_u32 %s, %s, %s" % (s(sT2), s(sT2), s(sT1)))
        A("s_lshl_b32 %s, %s, 10" % (s(sT2), s(sT2)))
        A("s_add_u32 %s, %s, %d" % (s(sT2), s(sT2), HB + L * HB_ST + NX5 * 2048))
        P.wait("x", "xl5_%d" % L, own=True)
        hstamp(A, "xl5")
        ht = {}
        for j in range(NX5, 14):
            for tt in range(2):
                ht[(j, tt)] = A("buffer_load_dwordx4 %s, v120, %s, %s offen offset:%d" % (hreg(j, tt), s(sWS, 4), s(sT2), tt * 256))
            A("s_add_u32 %s, %s, 2048" % (s(sT2), s(sT2)))
        for j in range(NX5, 14):
            k = j - NX5
            A.wait(ht[(j, 0)], ht[(j, 1)], *T[("s", j)])
            for ft in range(7):
                for tt in range(2):
                    dd = a(HACC + (tt * 7 + ft) * 4, 4)
                    A("%s %s, %s, %s, %s" % (MF16, dd, sreg(j, ft), hreg(j, tt), "0" if j == NX5 else dd))
            if L == 1:
                hstamp(A, "hs%d" % j)
        if L == 0 and ENV("W_Q", "1") == "1":
            warm_q()
        P.wait("x", "dd5_%d" % L)
        for k in range(14):
            A("ds_write_b128 v121, %s offset:%d" % (a(HACC + k * 4, 4), (k // 7) * 16 * RED_PITCH + (k % 7) * 64))
        P.post("hred5_%d" % L)
        hstamp(A, "hred")
        if L == 0:
            P.wait("x", "dd8_%d" % L)
            q(1, 1)
            P.wait("x", "hfree5_%d" % L)
            q(1, 2)
            q(1, 0)


def gen_main():
    A = Asm()
    kernel_head(A, "main_kernel")
    A("s_cmp_ge_u32 s2, 256")
    A("s_cbranch_scc1 Lmain_end")
    A("s_load_dwordx2 s[30:31], s[0:1], 0")
    A("s_load_dwordx2 s[32:33], s[0:1], 56")
    A("s_load_dwordx4 s[52:55], s[0:1], 64")
    A("v_lshrrev_b32 v4, 6, v0")
    A("v_and_b32 v0, 63, v0")
    A("v_readfirstlane_b32 %s, v4" % s(sWAVE))
    A("v_lshlrev_b32 %s, 4, v0" % v(vL16))
    if ENV("CODEWARM", "0") == "1":
        A("s_getpc_b64 s[56:57]")
        A.raw("Lpc0:")
        A("s_sub_u32 s56, s56, Lpc0-main_kernel")
        A("s_subb_u32 s57, s57, 0")
        A("s_lshr_b32 %s, s2, 3" % s(sT0))
        A("s_lshl_b32 %s, %s, 3" % (s(sT0), s(sT0)))
        A("s_add_u32 %s, %s, %s" % (s(sT0), s(sT0), s(sWAVE)))
        A("s_lshl_b32 %s, %s, 9" % (s(sT0), s(sT0)))
        A("v_and_b32 v5, 3, v0")
        A("v_lshlrev_b32 v5, 7, v5")
        A("v_add_u32 v5, %s, v5" % s(sT0))
        A("v_min_u32 v5, Lmain_end-main_kernel, v5")
        A("s_mov_b64 exec, 15")
        A("global_load_dword a127, v5, s[56:57]")
        A("s_mov_b64 exec, -1")
    A("s_and_b32 %s, s2, 7" % s(sTEAM))
    A("s_lshl_b32 %s, %s, 1" % (s(sTEAM), s(sTEAM)))
    A("s_lshr_b32 %s, s2, 7" % s(sHALF))
    A("s_add_u32 %s, %s, %s" % (s(sTEAM), s(sTEAM), s(sHALF)))
    A("s_lshr_b32 %s, s2, 3" % s(sMEM))
    A("s_and_b32 %s, %s, 15" % (s(sMEM), s(sMEM)))
    A("s_lshr_b32 %s, %s, 2" % (s(sTG), s(sMEM)))
    A("s_and_b32 %s, %s, 3" % (s(sFG), s(sMEM)))
    A("s_and_b32 %s, %s, 3" % (s(sHW), s(sWAVE)))
    A("s_lshl_b32 %s, %s, 2" % (s(sFLW), s(sWAVE)))
    A("s_xor_b32 %s, %s, 16" % (s(sFLP), s(sFLW)))
    A("s_add_u32 %s, %s, %d" % (s(sFLW), s(sFLW), FL))
    A("s_add_u32 %s, %s, %d" % (s(sFLP), s(sFLP), FL))
    A("v_mov_b32 %s, %s" % (v(vFA), s(sFLW)))
    A("v_mov_b32 v5, 0")
    A("ds_write_b32 %s, v5" % v(vFA))
    A("s_getreg_b32 %s, hwreg(HW_REG_XCC_ID)" % s(sPURE))
    A("s_and_b32 %s, %s, 15" % (s(sPURE), s(sPURE)))
    A("s_add_u32 %s, %s, 1" % (s(sPURE), s(sPURE)))
    A("s_waitcnt lgkmcnt(0)")
    A.lg_done = A.lg
    srd(A, sWS, 54, 55, WS_BYTES)
    srd(A, sX, 30, 31, 2048 * 896)
    srd(A, sOUT, 32, 33, 2048 * 896)
    srd(A, sDBG, 52, 53, 256)
    A("s_barrier")
    A("s_cmp_ge_u32 %s, 4" % s(sWAVE))
    A("s_cbranch_scc1 Lhelper")
    A("s_setprio 3")
    A("v_add_u32 %s, 0x10000, %s" % (v(vL16b), v(vL16)))
    A("v_add_u32 %s, 0x20000, %s" % (v(vL16c), v(vL16)))
    A("s_lshl_b32 %s, %s, 2" % (s(sT0), s(sTEAM)))
    A("s_add_u32 %s, %s, %s" % (s(sGTG), s(sT0), s(sWAVE)))
    A("s_add_u32 %s, %s, %s" % (s(sOTG), s(sT0), s(sTG)))
    PX = Prog(A, "x")
    PX.early = load_x_and_stats(A, 96, "", 28)
    PX.post("xl1_0")
    A("s_lshl_b32 %s, %s, 8" % (s(sT0), s(sTEAM)))
    A("s_add_u32 %s, %s, %d" % (s(sT0), s(sT0), FLAGS))
    A("s_lshl_b32 %s, %s, 4" % (s(sT1), s(sMEM)))
    A("s_add_u32 %s, %s, %s" % (s(sMYFLAG), s(sT0), s(sT1)))
    A("s_lshl_b32 %s, %s, 2" % (s(sT2), s(sWAVE)))
    A("s_add_u32 %s, %s, %s" % (s(sMYFLAG), s(sMYFLAG), s(sT2)))
    A("s_lshl_b32 %s, %s, 2" % (s(sT3), s(sTG)))
    A("v_and_b32 v4, 15, v0")
    A("v_lshlrev_b32 v4, 2, v4")
    A("s_lshl_b32 %s, %s, 6" % (s(sT1), s(sWAVE)))
    A("s_add_u32 %s, %s, %s" % (s(sT1), s(sT0), s(sT1)))
    A("v_add_u32 v6, %s, v4" % s(sT1))
    A("v_accvgpr_write_b32 %s, v6" % a(aPA))
    A("v_and_b32 v4, 3, v0")
    A("v_lshlrev_b32 v5, 4, v4")
    A("s_add_u32 %s, %s, %s" % (s(sT1), s(sT1), s(sT3)))
    A("v_add_u32 v6, %s, v5" % s(sT1))
    A("v_accvgpr_write_b32 %s, v6" % a(aPB))
    A("v_and_b32 v4, 15, v0")
    A("v_mul_u32_u24 v4, %d, v4" % RED_PITCH)
    A("v_lshrrev_b32 v5, 4, v0")
    A("v_lshl_add_u32 v4, v5, 4, v4")
    A("s_mul_i32 %s, %s, %d" % (s(sT0), s(sWAVE), RED_WAVE))
    A("s_add_u32 %s, %s, %d" % (s(sT0), s(sT0), REGB))
    A("v_add_u32 %s, %s, v4" % (v(vRED_W), s(sT0)))
    A("v_lshrrev_b32 v4, 3, v0")
    A("s_lshl_b32 %s, %s, 3" % (s(sT0), s(sWAVE)))
    A("v_add_u32 v4, %s, v4" % s(sT0))
    A("v_and_b32 v5, 7, v0")
    A("v_min_u32 v5, 6, v5")
    A("v_mul_u32_u24 v6, %d, v4" % RED_PITCH)
    A("v_lshl_add_u32 v6, v5, 6, v6")
    A("v_add_u32 %s, %d, v6" % (v(vRED_R), REGB))
    A("s_mul_i32 %s, %s, %d" % (s(sT0), s(sOTG), 28 * KB))
    A("s_mul_i32 %s, %s, %d" % (s(sT1), s(sFG), 7 * KB))
    A("s_add_u32 %s, %s, %s" % (s(sT0), s(sT0), s(sT1)))
    A("v_lshlrev_b32 v6, 10, v5")
    A("v_lshl_add_u32 v6, v4, 4, v6")
    A("v_add_u32 %s, %s, v6" % (v(vXST), s(sT0)))
    A("s_lshl_b32 %s, %s, 5" % (s(sT0), s(sOTG)))
    A("v_add_u32 v6, %s, v4" % s(sT0))
    A("v_mul_u32_u24 v7, 896, v6")
    A("v_lshl_add_u32 v7, v5, 5, v7")
    A("s_mul_i32 %s, %s, 224" % (s(sT1), s(sFG)))
    A("v_add_u32 %s, %s, v7" % (v(vOUTO), s(sT1)))
    A("v_lshlrev_b32 v7, 5, v6")
    A("s_lshl_b32 %s, %s, 3" % (s(sT1), s(sFG)))
    A("v_add_u32 %s, %s, v7" % (v(vSTO), s(sT1)))
    A("v_and_b32 v4, 15, v0")
    A("v_lshlrev_b32 v4, 4, v4")
    A("v_lshrrev_b32 v5, 5, v0")
    A("v_lshl_add_u32 v4, v5, 8, v4")
    A("v_bfe_u32 v5, v0, 4, 1")
    A("v_lshl_add_u32 %s, v5, 14, v4" % v(vOST))
    stamp(A, "start")
    for c in range(2):
        A("buffer_load_dwordx4 %s, %s, %s, 0 offen offset:%d" % (v(vRES + 4 * c, 4), v(vOUTO), s(sX, 4), c * 16))
    for L in range(2):
        for ph in (phase1, phase2, phase3, phase4, phase5):
            ph(PX, L)
    if ENV("HST") != "1":
        dump_stamps(A)
    A("s_endpgm")
    nx = A.ninst
    B = Asm()
    B.label("Lhelper")
    PH = Prog(B, "h")
    hstamp(B, "start")
    gen_helper(PH)
    if ENV("HST") == "1":
        dump_stamps(B)
    B.label("Lmain_end")
    B("s_endpgm")
    EV["x"] = PX.ids
    EV["h"] = PH.ids
    sys.stderr.write("main: X %d instr (%d auto nops), helper %d, events %d/%d\n" % (nx, A.nops, B.ninst, PX.n, PH.n))
    return A.text() + B.text() + kernel_desc("main_kernel", 256, 128)


def generate():
    global STAMPS
    A = Asm()
    A.raw(HEADER.rstrip())
    A.raw("; @launch kernel=prep_kernel grid=(%d,1,1) block=(256,1,1) lds=33792" % PREP_WGS)
    A.raw("; @launch kernel=main_kernel grid=(256,1,1) block=(512,1,1) lds=%d" % LDS_TOTAL)
    A.raw('.amdgcn_target "amdgcn-amd-amdhsa--gfx950"')
    gen_prep(A)
    gen_main()
    if STAMPS is not None:
        STAMPS = []
    return A.text() + gen_main()


if __name__ == "__main__":
    out = sys.argv[1] if len(sys.argv) > 1 else "k4.s"
    if len(sys.argv) > 2 and sys.argv[2] == "stamps":
        STAMPS = []
    open(out, "w").write(generate())
    if STAMPS is not None:
        open(out + ".stamps", "w").write("\n".join(STAMPS))
    elif os.path.exists(out + ".stamps"):
        os.remove(out + ".stamps")
```
